```python
import torch

def _softmax(x, axis=-1):
    return torch.softmax(x, dim=axis)
def _gelu(x):
    return torch.nn.functional.gelu(x, approximate="tanh")
def _silu(x):
    return torch.nn.functional.silu(x)
def _sigmoid(x):
    return torch.sigmoid(x)
def _layernorm(x, axis=-1, eps=1e-5):
    m = x.mean(dim=axis, keepdim=True)
    v = x.var(dim=axis, keepdim=True, unbiased=False)
    return (x - m) / torch.sqrt(v + eps)
def _scatter_add(tgt, idx, src, axis=0):
    return tgt.clone().index_add_(axis, idx, src)
def _segment_sum(src, seg, n):
    out = torch.zeros((n,) + src.shape[1:], dtype=src.dtype)
    return out.index_add_(0, seg, src)
def _pad(x, pw):
    flat = tuple(v for pair in reversed(pw) for v in pair)
    return torch.nn.functional.pad(x, flat)

kernel_name = 'standalone__mha_block_cached__near_ridge'

def setup_inputs():

    _w = (lambda a: (lambda t: t.to(torch.bfloat16) if t.is_floating_point() else t)(torch.as_tensor(a)))
    B, Sq, D = 8, 128, 1024
    H, Sk, Dh = 32, 1024, 128
    return {
        "x": _w((lambda *s: torch.randn(*s, dtype=torch.bfloat16) * 0.8)(B, Sq, D)),
        "k_cache": _w((lambda *s: torch.randn(*s, dtype=torch.bfloat16) * 0.8)(B, H, Sk, Dh)),
        "v_cache": _w((lambda *s: torch.randn(*s, dtype=torch.bfloat16) * 0.05)(B, H, Sk, Dh)),
        "wq": _w((lambda *s: torch.randn(*s, dtype=torch.bfloat16) * 0.8)(D, H * Dh) * (D ** -0.5)),
        "wo": _w((lambda *s: torch.randn(*s, dtype=torch.bfloat16) * 0.05)(H * Dh, D) * ((H * Dh) ** -0.5)),
    }

def reference(x, k_cache, v_cache, wq, wo):
    B, Sq, D = x.shape
    H, Dh = 32, 128
    q = (lambda x, *d: x.permute(*d))((x @ wq).reshape(B, Sq, H, Dh), 0, 2, 1, 3)
    scores = torch.einsum("bhqd,bhkd->bhqk", q, k_cache) * (Dh ** -0.5)
    p = _softmax(scores, axis=-1)
    o = torch.einsum("bhqk,bhkd->bhqd", p, v_cache)
    return (lambda x, *d: x.permute(*d))(o, 0, 2, 1, 3).reshape(B, Sq, H * Dh) @ wo
```

```python
import re

TRANS = ("v_exp_f32", "v_log_f32", "v_rcp_f32", "v_rsq_f32", "v_sqrt_f32", "v_sin_f32", "v_cos_f32")

_reg_re = re.compile(r"^(-|abs\()?([vsa])(\d+|\[(\d+):(\d+)\])\)?$")


def regs_of(tok):
    tok = tok.strip()
    if tok in ("vcc", "exec"):
        return [(tok, 0), (tok, 1)]
    if tok in ("vcc_lo", "exec_lo"):
        return [(tok[:-3], 0)]
    if tok in ("vcc_hi", "exec_hi"):
        return [(tok[:-3], 1)]
    if tok == "m0":
        return [("m0", 0)]
    if tok == "scc":
        return [("scc", 0)]
    m = _reg_re.match(tok)
    if not m:
        return []
    kind = m.group(2)
    if m.group(4) is not None:
        return [(kind, i) for i in range(int(m.group(4)), int(m.group(5)) + 1)]
    return [(kind, int(m.group(3)))]


class Inst:
    __slots__ = ("text", "op", "kind", "wr", "rd", "nops", "label", "target", "tokens_out", "tokens_in", "cost", "cls")

    def __init__(self, text, tokens_out=(), tokens_in=()):
        self.text = text
        self.label = None
        self.target = None
        self.tokens_out = list(tokens_out)
        self.tokens_in = list(tokens_in)
        t = text.split(";")[0].strip()
        parts = t.split(None, 1)
        self.op = parts[0]
        rest = parts[1] if len(parts) > 1 else ""
        ops = [o.strip() for o in rest.split(",")] if rest else []
        opr = []
        for o in ops:
            sub = o.split()
            if sub:
                opr.append(sub[0])
        mods = rest.replace(",", " ").split()
        op = self.op
        self.nops = 1
        wr, rd = [], []
        if op.startswith("v_mfma"):
            self.kind = "mfma"
            wr = regs_of(opr[0])
            for o in opr[1:4]:
                rd += regs_of(o)
            self.cls = (regs_of(opr[1]), regs_of(opr[2]), regs_of(opr[3]))
        elif op.startswith("v_cmp"):
            self.kind = "valu"
            wr = regs_of(opr[0])
            if op.startswith("v_cmpx"):
                wr += regs_of("exec")
            for o in opr[1:]:
                rd += regs_of(o)
        elif op.startswith("v_permlane") and "swap" in op:
            self.kind = "valu"
            wr = regs_of(opr[0]) + regs_of(opr[1])
            rd = list(wr)
        elif op.startswith("v_"):
            self.kind = "trans" if op.replace("_e32", "").replace("_e64", "") in TRANS else "valu"
            if op == "v_nop":
                pass
            else:
                wr = regs_of(opr[0])
                srcs = opr[1:]
                if "_co_" in op:
                    wr += regs_of(opr[1])
                    srcs = opr[2:]
                for o in srcs:
                    rd += regs_of(o)
                if op.startswith("v_fmac") or op.startswith("v_pk_fmac") or op.startswith("v_writelane"):
                    rd += regs_of(opr[0])
                if op.startswith("v_cndmask") and len(opr) == 3:
                    rd += regs_of("vcc")
        elif op.startswith("ds_"):
            self.kind = "ds"
            if op.startswith("ds_read") or op.startswith("ds_bpermute") or op.startswith("ds_swizzle") or op.startswith("ds_permute"):
                wr = regs_of(opr[0])
                for o in opr[1:]:
                    rd += regs_of(o)
            else:
                for o in opr:
                    rd += regs_of(o)
                if "_rtn" in op:
                    wr = regs_of(opr[0])
        elif op.startswith("buffer_") or op.startswith("global_"):
            self.kind = "vmem"
            if op in ("buffer_wbl2", "buffer_inv"):
                pass
            elif "load" in op:
                if "lds" in mods or "_lds_" in op:
                    for o in opr:
                        rd += regs_of(o)
                    rd += regs_of("m0")
                else:
                    wr = regs_of(opr[0])
                    for o in opr[1:]:
                        rd += regs_of(o)
            elif "atomic" in op:
                for o in opr:
                    rd += regs_of(o)
                if "sc0" in mods:
                    wr = regs_of(opr[0])
                    if op.startswith("global_"):
                        rd = []
                        for o in opr[1:]:
                            rd += regs_of(o)
            else:
                for o in opr:
                    rd += regs_of(o)
        elif op.startswith("s_load") or op.startswith("s_buffer_load") or op in ("s_memtime", "s_memrealtime"):
            self.kind = "smem"
            wr = regs_of(opr[0])
            for o in opr[1:]:
                rd += regs_of(o)
        elif op == "s_nop":
            self.kind = "nop"
            self.nops = int(opr[0], 0) + 1
        elif op in ("s_waitcnt", "s_barrier", "s_endpgm", "s_setprio", "s_sleep", "s_branch") or op.startswith("s_cbranch"):
            self.kind = "ctl"
            if op == "s_branch" or op.startswith("s_cbranch"):
                self.target = opr[0]
                if "scc" in op:
                    rd = regs_of("scc")
                if "vcc" in op:
                    rd = regs_of("vcc")
                if "exec" in op:
                    rd = regs_of("exec")
        elif op.startswith("s_"):
            self.kind = "salu"
            if op.startswith("s_cmp") or op.startswith("s_bitcmp"):
                wr = regs_of("scc")
                for o in opr:
                    rd += regs_of(o)
            else:
                wr = regs_of(opr[0])
                for o in opr[1:]:
                    rd += regs_of(o)
                if not (op.startswith("s_mov") or op.startswith("s_mul_i32") or op.startswith("s_mul_hi") or op.startswith("s_cselect") or op.startswith("s_getreg") or op.startswith("s_movk")):
                    wr += regs_of("scc")
                if op.startswith("s_cselect") or op.startswith("s_addc") or op.startswith("s_subb"):
                    rd += regs_of("scc")
                if op.startswith("s_addk") or op.startswith("s_mulk"):
                    rd += regs_of(opr[0])
                if "saveexec" in op:
                    wr += regs_of("exec")
                    rd += regs_of("exec")
        else:
            raise ValueError("unknown op " + text)
        self.wr = set(wr)
        self.rd = set(rd)
        self.cost = {"mfma": 8, "trans": 8, "valu": 4, "ds": 4, "vmem": 4, "salu": 4, "smem": 4, "nop": 4 * self.nops, "ctl": 4}[self.kind]


def mfma_passes(op):
    if "32x32x16" in op:
        return 8
    if "16x16x32" in op:
        return 4
    raise ValueError(op)


def isv(r):
    return r[0] in ("v", "a")


def required_states(p, c):
    need = 0
    pv_wr = {r for r in p.wr if isv(r)}
    ps_wr = {r for r in p.wr if not isv(r)}
    if p.kind in ("valu", "trans"):
        if c.kind == "mfma" and (pv_wr & c.rd):
            need = max(need, 2)
        if p.kind == "trans" and c.kind in ("valu",) and (pv_wr & (c.rd | c.wr)):
            need = max(need, 1)
        if p.kind == "trans" and c.kind in ("trans",) and (pv_wr & c.rd):
            need = max(need, 1)
        if c.op.startswith("v_permlane") and (pv_wr & c.rd):
            need = max(need, 2)
        if (c.op.startswith("v_readlane") or c.op.startswith("v_readfirstlane")) and (pv_wr & c.rd):
            need = max(need, 1)
        if "dpp" in c.text or "row_" in c.text or "quad_perm" in c.text:
            if pv_wr & c.rd:
                need = max(need, 2)
        if ps_wr:
            if c.kind == "vmem" and (ps_wr & c.rd):
                need = max(need, 5)
            if c.kind in ("valu", "trans") and (ps_wr & c.rd):
                need = max(need, 2 if not (c.op.startswith("v_readlane") or c.op.startswith("v_writelane")) else 4)
            if c.kind in ("salu", "ctl", "smem") and (ps_wr & c.rd):
                need = max(need, 2)
            if ("exec", 0) in ps_wr:
                if c.kind == "mfma" or c.op.startswith("v_permlane") or c.op.startswith("v_read"):
                    need = max(need, 4)
                if c.kind in ("valu", "trans", "ds", "vmem"):
                    need = max(need, 5)
    if p.kind == "mfma":
        n = mfma_passes(p.op)
        tab_ab = {4: 8, 8: 12}[n]
        tab_c = {4: 6, 8: 10}[n]
        tab_war = {4: 3, 8: 7}[n]
        D = p.wr
        if c.kind == "mfma":
            a, b, cc = c.cls
            if D & (set(a) | set(b)):
                need = max(need, tab_ab)
            if D & set(cc):
                if set(cc) == D and c.op == p.op:
                    pass
                else:
                    need = max(need, tab_c)
            elif D & c.wr:
                need = max(need, tab_c)
        else:
            if D & (c.rd | c.wr):
                need = max(need, tab_ab)
            if c.kind in ("valu", "trans") and (set(p.cls[2]) & c.wr):
                need = max(need, tab_war)
    if p.kind == "salu" and ("m0", 0) in p.wr and ("m0", 0) in c.rd and c.kind in ("vmem", "ds"):
        need = max(need, 1)
    if p.kind == "vmem" and ("store" in p.op or "atomic" in p.op) and ("x4" in p.op or "x3" in p.op):
        data = {r for r in p.rd if isv(r)}
        if data & c.wr:
            need = max(need, 2)
    return need


class Prog:
    def __init__(self):
        self.items = []
        self.lgkm = []
        self.vm = []
        self.auto_wait = True

    def label(self, name):
        self.items.append(("label", name))

    def raw(self, text):
        self.items.append(("raw", text))

    def comment(self, text):
        self.items.append(("raw", "    ; " + text))

    def _wait_for(self, inst):
        touched = inst.rd | inst.wr | set(inst.tokens_in)
        lg = None
        for i, res in enumerate(self.lgkm):
            if res & touched:
                lg = len(self.lgkm) - 1 - i
        vm = None
        for i, res in enumerate(self.vm):
            if res & touched:
                vm = len(self.vm) - 1 - i
        if lg is None and vm is None:
            return
        s = "s_waitcnt"
        if vm is not None:
            assert vm <= 63
            s += " vmcnt(%d)" % vm
            self.vm = self.vm[len(self.vm) - vm:] if vm else []
        if lg is not None:
            lg = min(lg, 15)
            s += " lgkmcnt(%d)" % lg
            self.lgkm = self.lgkm[len(self.lgkm) - lg:] if lg else []
        self.items.append(Inst(s))

    def add(self, inst):
        if isinstance(inst, str):
            inst = Inst(inst)
        if self.auto_wait:
            self._wait_for(inst)
        if inst.op == "s_waitcnt":
            m = re.search(r"vmcnt\((\d+)\)", inst.text)
            if m:
                n = int(m.group(1))
                self.vm = self.vm[len(self.vm) - n:] if n and len(self.vm) > n else ([] if n == 0 else self.vm)
            m = re.search(r"lgkmcnt\((\d+)\)", inst.text)
            if m:
                n = int(m.group(1))
                self.lgkm = self.lgkm[len(self.lgkm) - n:] if n and len(self.lgkm) > n else ([] if n == 0 else self.lgkm)
        self.items.append(inst)
        if inst.kind == "ds":
            self.lgkm.append(set(inst.wr) | set(inst.tokens_out))
        elif inst.kind == "smem":
            self.lgkm.append(set(inst.wr) | set(inst.tokens_out))
            self.lgkm.append(set())
        elif inst.kind == "vmem" and inst.op not in ("buffer_inv",):
            self.vm.append(set(inst.wr) | set(inst.tokens_out))
        return inst

    def __call__(self, text, tokens_out=(), tokens_in=()):
        return self.add(Inst(text, tokens_out, tokens_in))

    def need(self, tokens):
        dummy = Inst("s_nop 0", tokens_in=tokens)
        self._wait_for(dummy)

    def reset_tracking(self):
        self.lgkm = []
        self.vm = []

    def pad_hazards(self):
        total = 0
        for _pass in range(10):
            items = self.items
            branches = {}
            for i, it in enumerate(items):
                if isinstance(it, Inst) and it.target is not None:
                    branches.setdefault(it.target, []).append(i)
            extra = {}
            for i, it in enumerate(items):
                if not isinstance(it, Inst) or it.kind == "nop":
                    continue
                if not (it.rd or it.wr):
                    continue
                short = 0
                stack = [(i - 1, 0)]
                seen = set()
                while stack:
                    j, dist = stack.pop()
                    while j >= 0 and dist < 13:
                        if (j, dist) in seen:
                            break
                        seen.add((j, dist))
                        p = items[j]
                        if isinstance(p, tuple):
                            if p[0] == "label":
                                for b in branches.get(p[1], []):
                                    stack.append((b, dist))
                            j -= 1
                            continue
                        if p.kind in ("valu", "trans", "mfma", "salu", "vmem"):
                            need = required_states(p, it)
                            if need > dist:
                                short = max(short, need - dist)
                        dist += p.nops + extra.get(j, 0)
                        j -= 1
                if short > 0:
                    extra[i] = short
            if not extra:
                break
            out = []
            for i, it in enumerate(items):
                if i in extra:
                    out.append(Inst("s_nop %d" % (extra[i] - 1)))
                    total += extra[i]
                out.append(it)
            self.items = out
        return total

    def text(self):
        out = []
        for it in self.items:
            if isinstance(it, Inst):
                out.append("    " + it.text)
            elif it[0] == "label":
                out.append(it[1] + ":")
            else:
                out.append(it[1])
        return "\n".join(out) + "\n"


def check_order(seq, final):
    pos = {id(x): i for i, x in enumerate(final)}
    assert len(pos) == len(seq) == len(final), (len(pos), len(seq), len(final))
    for i, a in enumerate(seq):
        aw = a.wr | set(a.tokens_out)
        ar = a.rd | set(a.tokens_in)
        for b in seq[i + 1:]:
            bw = b.wr | set(b.tokens_out)
            br = b.rd | set(b.tokens_in)
            if (aw & (br | bw)) or (ar & bw):
                if pos[id(a)] > pos[id(b)]:
                    raise AssertionError("order violated:\n  %s\n  %s" % (a.text, b.text))
```

```python
import sys, math, struct
from asmlib import Prog, Inst, check_order

NAME = "standalone__mha_block_cached__near_ridge"
SLOT = 16384
NSLOT = 10
LDS_BYTES = SLOT * NSLOT


def f32bits(x):
    return struct.unpack("<I", struct.pack("<f", x))[0]


def vr(a, n=1):
    return "v%d" % a if n == 1 else "v[%d:%d]" % (a, a + n - 1)


def interleave(main, fillers, budget=24, lead=0):
    total = sum(f.cost for f in fillers)
    n = len(main)
    out = []
    fi = 0
    acc = 0.0
    per = total / float(n) if n else 0
    for k, m in enumerate(main):
        target = per * k + lead
        while fi < len(fillers) and acc < target:
            out.append(fillers[fi]); acc += fillers[fi].cost; fi += 1
        out.append(m)
    while fi < len(fillers):
        out.append(fillers[fi]); fi += 1
    return out


def merge_streams(*streams):
    tot = [float(sum(i.cost for i in s)) or 1.0 for s in streams]
    idx = [0] * len(streams)
    done = [0.0] * len(streams)
    out = []
    while True:
        best = None
        for k, s in enumerate(streams):
            if idx[k] < len(s):
                frac = done[k] / tot[k]
                if best is None or frac < best[0]:
                    best = (frac, k)
        if best is None:
            break
        k = best[1]
        out.append(streams[k][idx[k]])
        done[k] += streams[k][idx[k]].cost
        idx[k] += 1
    return out


STAMPV = 243


def stamp_init(p, opts):
    if not opts.get("stamp"):
        return
    p("s_mov_b32 s59, 0")
    p("v_mov_b32 v%d, 0" % STAMPV)
    p("s_memrealtime s[60:61]")
    p("s_waitcnt lgkmcnt(0)")
    p("v_writelane_b32 v%d, s60, 62" % STAMPV)


def stamp(p, opts):
    if not opts.get("stamp"):
        return
    p("s_memtime s[60:61]")
    p("s_waitcnt lgkmcnt(0)")
    p("s_mov_b32 m0, s59")
    p("s_nop 1")
    p("v_writelane_b32 v%d, s60, m0" % STAMPV)
    p("s_add_u32 s59, s59, 1")


def stamp_flush(p, opts, srd, lanereg, region):
    if not opts.get("stamp"):
        return
    p("s_memrealtime s[60:61]")
    p("s_waitcnt lgkmcnt(0)")
    p("v_writelane_b32 v%d, s60, 63" % STAMPV)
    p("s_lshl_b32 s62, s2, 3")
    p("s_add_u32 s62, s62, s14")
    p("s_lshl_b32 s62, s62, 8")
    p("s_add_u32 s62, s62, 0x%x" % (region << 24))
    p("s_mov_b32 s64, s12")
    p("s_mov_b32 s65, s13")
    p("s_mov_b32 s66, 0x10000000")
    p("s_mov_b32 s67, 0x20000")
    p("v_lshlrev_b32 v244, 2, %s" % lanereg)
    p("buffer_store_dword v%d, v244, s[64:67], s62 offen" % STAMPV)


def gen_k1(p, opts):
    K = "attn_kernel"
    p.raw(".globl %s\n.p2align 8\n.type %s,@function" % (K, K))
    p.label(K)
    p("s_cmp_ge_u32 s2, 256")
    p("s_cbranch_scc1 K1_END")
    p("s_load_dwordx4 s[4:7], s[0:1], 0")
    p("s_load_dwordx4 s[8:11], s[0:1], 16")
    p("s_load_dwordx2 s[12:13], s[0:1], 56")
    p("v_lshrrev_b32 v1, 6, v0")
    p("v_and_b32 v0, 63, v0")
    p("v_readfirstlane_b32 s14, v1")
    p("s_lshr_b32 s15, s2, 5")
    p("s_and_b32 s16, s2, 31")
    p("s_waitcnt lgkmcnt(0)")
    p.reset_tracking()
    p("s_lshl_b32 s17, s15, 18")
    p("s_add_u32 s20, s4, s17")
    p("s_addc_u32 s21, s5, 0")
    p("s_mov_b32 s22, 0x40000")
    p("s_mov_b32 s23, 0x20000")
    p("s_lshl_b32 s17, s16, 8")
    p("s_add_u32 s24, s10, s17")
    p("s_addc_u32 s25, s11, 0")
    p("s_sub_u32 s26, 0x800000, s17")
    p("s_mov_b32 s27, 0x20000")
    p("s_lshl_b32 s17, s2, 18")
    p("s_add_u32 s28, s6, s17")
    p("s_addc_u32 s29, s7, 0")
    p("s_mov_b32 s30, 0x40000")
    p("s_mov_b32 s31, 0x20000")
    p("s_add_u32 s32, s8, s17")
    p("s_addc_u32 s33, s9, 0")
    p("s_mov_b32 s34, 0x40000")
    p("s_mov_b32 s35, 0x20000")
    p("s_mov_b32 s36, s12")
    p("s_mov_b32 s37, s13")
    p("s_mov_b32 s38, 0x800000")
    p("s_mov_b32 s39, 0x20000")
    stamp_init(p, opts)
    stamp(p, opts)
    p("s_cmp_ge_u32 s14, 4")
    p("s_cbranch_scc1 K1_LOADER")
    gen_k1_compute(p, opts)
    p("s_branch K1_END")
    p.label("K1_LOADER")
    p.reset_tracking()
    gen_k1_loader(p, opts)
    p.label("K1_END")
    p("s_endpgm")


def k1_tiles():
    tiles = []
    for s in range(16):
        pp = (s + 2) % 3
        tiles.append(("X%d" % s, "X", s, s, 2 * pp))
        tiles.append(("W%d" % s, "W", s, s, 2 * pp + 1))
    tiles.append(("K0", "K", 0, 16, 6))
    for i in range(16):
        if i < 15:
            tiles.append(("K%d" % (i + 1), "K", i + 1, 17 + i, (6 + 2 * i + 1) % 10))
        tiles.append(("V%d" % i, "V", i, 17 + i, (6 + 2 * i + 2) % 10))
    return tiles


def gen_k1_loader(p, opts):
    nt = " nt" if opts.get("nt", 1) else ""
    p("s_sub_u32 s40, s14, 4")
    p("s_lshl_b32 s41, s40, 12")
    p("v_lshrrev_b32 v1, 4, v0")
    p("v_and_b32 v2, 15, v0")
    p("v_lshrrev_b32 v3, 3, v0")
    p("v_and_b32 v4, 7, v0")
    for ii in range(4):
        p("v_add_u32 v5, %d, v1" % (4 * ii))
        p("v_xor_b32 v5, v5, v2")
        p("v_lshlrev_b32 v5, 4, v5")
        p("v_lshl_add_u32 v5, v1, 8, v5")
        p("v_add_u32 v%d, s41, v5" % (10 + ii))
    p("v_lshlrev_b32 v5, 2, v1")
    p("v_xor_b32 v5, v5, v2")
    p("v_lshlrev_b32 v6, 4, v5")
    p("v_lshl_add_u32 v5, v1, 8, v6")
    p("v_add_u32 v14, s41, v5")
    p("s_lshl_b32 s42, s40, 4")
    for ii in range(4):
        p("v_add_u32 v5, s42, v1")
        p("v_add_u32 v5, %d, v5" % (4 * ii))
        p("v_lshl_add_u32 v5, v5, 13, v6")
        if ii:
            p("v_subrev_u32 v5, %d, v5" % (ii * 1024))
        p("v_mov_b32 v%d, v5" % (16 + ii))
    p("s_lshl_b32 s42, s40, 5")
    for ii in range(4):
        p("v_add_u32 v5, %d, v1" % (4 * (ii & 1)))
        p("v_xor_b32 v5, v5, v4")
        p("v_lshlrev_b32 v5, 4, v5")
        p("v_add_u32 v7, s42, v3")
        p("v_add_u32 v7, %d, v7" % (8 * ii))
        p("v_lshl_add_u32 v5, v7, 11, v5")
        if ii:
            p("v_subrev_u32 v5, %d, v5" % (ii * 1024))
        p("v_mov_b32 v%d, v5" % (20 + ii))

    tiles = k1_tiles()
    rot = opts.get("rot", 1)
    p("s_lshl_b32 s52, s15, 1")
    p("s_lshr_b32 s53, s16, 3")
    p("s_lshl_b32 s53, s53, 2")
    p("s_add_u32 s52, s52, s53")

    def issue(t):
        name, kind, idx, need, slot = t
        p("s_add_u32 m0, s41, %d" % (slot * SLOT))
        soff = {"X": idx * 128, "W": idx * 64 * 8192, "K": idx * 16384, "V": idx * 16384}[kind]
        if rot and kind in "XW":
            p("s_add_u32 s43, s52, %d" % idx)
            p("s_and_b32 s43, s43, 15")
            p("s_lshl_b32 s43, s43, %d" % (7 if kind == "X" else 19))
        else:
            p("s_mov_b32 s43, %d" % soff)
        for ii in range(4):
            v = {"X": 20 + ii, "W": 16 + ii, "K": 10 + ii, "V": 14}[kind]
            srd = {"X": "s[20:23]", "W": "s[24:27]", "K": "s[28:31]", "V": "s[32:35]"}[kind]
            pol = nt if kind in "KV" else (" nt" if opts.get("ntq", 0) else "")
            p("buffer_load_dwordx4 v%d, %s, s43 offen offset:%d%s lds" % (v, srd, ii * 1024, pol), tokens_out=[("tile", name)])

    last = {}
    avail = {}
    for t in tiles:
        name, kind, idx, need, slot = t
        avail[name] = last[slot] + 1 if slot in last else -1
        last[slot] = need
    for t in tiles:
        if avail[t[0]] == -1:
            issue(t)
    for n in range(33):
        p.need([("tile", t[0]) for t in tiles if t[3] == n])
        stamp(p, opts)
        p("s_barrier")
        for t in tiles:
            if avail[t[0]] == n:
                issue(t)
    stamp_flush(p, opts, None, "v0", 1)


def gen_k1_compute(p, opts):
    O = 0
    Q = 64
    S = [96, 128]
    KF = 160
    VF = 192
    KA = 224
    VA = 232
    M, L, MC, AL, T0, T1 = 236, 237, 238, 239, 240, 241
    LANE = 242
    XB = [64, 80]
    WB = [96, 160]
    XA, XA2, WA, WA2 = 224, 228, 232, 244
    p("v_mov_b32 v%d, v0" % LANE)
    lane = "v%d" % LANE
    p("v_and_b32 v250, 31, %s" % lane)
    p("v_lshrrev_b32 v251, 5, %s" % lane)
    p("s_lshl_b32 s40, s14, 5")
    p("v_add_u32 v252, s40, v250")
    p("v_bfe_u32 v253, v252, 1, 3")
    for t in range(4):
        p("v_add_u32 v254, %d, v251" % (2 * t))
        p("v_xor_b32 v254, v254, v253")
        p("v_lshlrev_b32 v254, 4, v254")
        p("v_lshl_add_u32 v%d, v252, 7, v254" % (XA + t))
        p("v_add_u32 v%d, 0x10000, v%d" % (XA2 + t, XA + t))
    p("v_bfe_u32 v252, %s, 2, 2" % lane)
    p("v_bfe_u32 v253, %s, 4, 1" % lane)
    p("v_and_b32 v254, 3, %s" % lane)
    p("v_lshlrev_b32 v254, 3, v254")
    p("v_lshl_add_u32 v249, v253, 5, v254")
    p("v_lshl_add_u32 v254, v251, 3, v252")
    p("v_lshl_add_u32 v254, v254, 8, v249")
    for j in range(4):
        p("v_xor_b32 v255, %d, v252" % j)
        p("v_lshl_add_u32 v255, v255, 6, v254")
        p("v_add_u32 v%d, 0x4000, v255" % (WA + j))
        p("v_add_u32 v%d, 0x14000, v255" % (WA2 + j))

    def q_reads(s):
        pp = (s + 2) % 3
        xa, wa, off = (XA, WA, pp * 32768) if pp < 2 else (XA2, WA2, 0)
        xb, wb = XB[s % 2], WB[s % 2]
        r = []
        for t in range(4):
            r.append(Inst("ds_read_b128 %s, v%d offset:%d" % (vr(xb + 4 * t, 4), xa + t, off)))
            for j in range(4):
                for u in range(2):
                    r.append(Inst("ds_read_b64_tr_b16 %s, v%d offset:%d" % (vr(wb + (t * 4 + j) * 4 + 2 * u, 2), wa + j, off + (16 * t + 4 * u) * 256)))
        return r

    def q_mfmas(s):
        xb, wb = XB[s % 2], WB[s % 2]
        m = []
        for t in range(4):
            for j in range(4):
                c = "0" if (s == 0 and t == 0) else vr(O + 16 * j, 16)
                m.append(Inst("v_mfma_f32_32x32x16_bf16 %s, %s, %s, %s" % (vr(O + 16 * j, 16), vr(wb + (t * 4 + j) * 4, 4), vr(xb + 4 * t, 4), c)))
        return m

    for s in range(16):
        p("s_barrier")
        stamp(p, opts)
        rd = q_reads(s)
        if s == 0:
            for i in rd:
                p.add(i)
        else:
            mm = q_mfmas(s - 1)
            for i in interleave(mm, rd, lead=8):
                p.add(i)
        p("s_waitcnt lgkmcnt(0)")
    p("s_barrier")
    stamp(p, opts)
    setup = []
    setup.append(Inst("v_and_b32 v253, 15, %s" % lane))
    for t in range(8):
        setup.append(Inst("v_add_u32 v254, %d, v251" % (2 * t)))
        setup.append(Inst("v_xor_b32 v254, v254, v253"))
        setup.append(Inst("v_lshlrev_b32 v254, 4, v254"))
        setup.append(Inst("v_lshl_add_u32 v254, v250, 8, v254"))
        setup.append(Inst("v_add_u32 v%d, %d, v254" % (KA + t, 6 * SLOT)))
    setup.append(Inst("v_lshl_add_u32 v254, v251, 2, v252"))
    setup.append(Inst("v_lshl_add_u32 v254, v254, 8, v249"))
    for j in range(4):
        setup.append(Inst("v_xor_b32 v255, %d, v252" % j))
        setup.append(Inst("v_lshl_add_u32 v255, v255, 6, v254"))
        setup.append(Inst("v_add_u32 v%d, %d, v255" % (VA + j, 8 * SLOT)))
    mm = q_mfmas(15)
    for i in interleave(mm, setup):
        p.add(i)
    cval = (128 ** -0.5) * math.log2(math.e)
    p("s_mov_b32 s44, 0x%08x" % f32bits(cval))
    p("s_mov_b32 s45, 0x8000")
    p("s_mov_b32 s46, 0x%08x" % ((0x8000 - LDS_BYTES) & 0xffffffff))
    p("s_mov_b32 s47, %d" % (7 * SLOT))
    p("s_mov_b32 s48, %d" % (8 * SLOT))
    for t in range(8):
        base = O + 16 * (t // 2) + 8 * (t % 2)
        for k in range(4):
            p("v_cvt_pk_bf16_f32 v%d, v%d, v%d" % (Q + 4 * t + k, base + 2 * k, base + 2 * k + 1))
    for t in range(8):
        p("v_permlane32_swap_b32 v%d, v%d" % (Q + 4 * t + 0, Q + 4 * t + 2))
        p("v_permlane32_swap_b32 v%d, v%d" % (Q + 4 * t + 1, Q + 4 * t + 3))

    def k_reads():
        r = []
        for n in range(16):
            kb, t = n // 8, n % 8
            r.append(Inst("ds_read_b128 %s, v%d offset:%d" % (vr(KF + 4 * (n % 8), 4), KA + t, kb * 8192)))
        return r

    def qk_mfmas(sb):
        m = []
        for n in range(16):
            kb, t = n // 8, n % 8
            c = "0" if t == 0 else vr(sb + 16 * kb, 16)
            m.append(Inst("v_mfma_f32_32x32x16_bf16 %s, %s, %s, %s" % (vr(sb + 16 * kb, 16), vr(KF + 4 * (n % 8), 4), vr(Q + 4 * t, 4), c)))
        return m

    def v_reads():
        r = []
        for n in range(16):
            ks, j = n // 4, n % 4
            for u in range(2):
                r.append(Inst("ds_read_b64_tr_b16 %s, v%d offset:%d" % (vr(VF + 4 * (n % 8) + 2 * u, 2), VA + j, (16 * ks + 8 * u) * 256)))
        return r

    def pv_mfmas(sb):
        m = []
        for n in range(16):
            ks, j = n // 4, n % 4
            m.append(Inst("v_mfma_f32_32x32x16_bf16 %s, %s, %s, %s" % (vr(O + 16 * j, 16), vr(VF + 4 * (n % 8), 4), vr(sb + 8 * ks, 4), vr(O + 16 * j, 16))))
        return m

    def exp_group(sb, g):
        b = sb + 8 * g
        r = []
        for k in range(8):
            r.append(Inst("v_fma_f32 v%d, v%d, s44, -v%d" % (b + k, b + k, MC)))
        for k in range(8):
            r.append(Inst("v_exp_f32 v%d, v%d" % (b + k, b + k)))
        for k in range(8):
            r.append(Inst("v_add_f32 v%d, v%d, v%d" % (L, L, b + k)))
        for k in range(4):
            r.append(Inst("v_cvt_pk_bf16_f32 v%d, v%d, v%d" % (b + k, b + 2 * k, b + 2 * k + 1)))
        fm, ex, ad, cv = r[0:8], r[8:16], r[16:24], r[24:28]
        o = []
        o += fm[0:2]
        for k in range(8):
            o.append(ex[k])
            if k + 2 < 8:
                o.append(fm[k + 2])
            if k >= 1:
                o.append(ad[k - 1])
            if k >= 3 and k % 2 == 1:
                o.append(cv[(k - 3) // 2])
        o.append(ad[7])
        o.append(cv[3])
        check_order(r, o)
        return o

    def max_update(sb, first=False):
        r = []
        r.append(Inst("v_max3_f32 v%d, v%d, v%d, v%d" % (T0, sb, sb + 1, sb + 2)))
        r.append(Inst("v_max3_f32 v%d, v%d, v%d, v%d" % (T1, sb + 16, sb + 17, sb + 18)))
        for k in range(3, 15, 2):
            r.append(Inst("v_max3_f32 v%d, v%d, v%d, v%d" % (T0, T0, sb + k, sb + k + 1)))
            r.append(Inst("v_max3_f32 v%d, v%d, v%d, v%d" % (T1, T1, sb + 16 + k, sb + 16 + k + 1)))
        r.append(Inst("v_max3_f32 v%d, v%d, v%d, v%d" % (T0, T0, sb + 15, sb + 31)))
        r.append(Inst("v_max_f32 v%d, v%d, v%d" % (T0, T0, T1)))
        r.append(Inst("v_mov_b32 v%d, v%d" % (T1, T0)))
        r.append(Inst("v_permlane32_swap_b32 v%d, v%d" % (T0, T1)))
        if first:
            r.append(Inst("v_max_f32 v%d, v%d, v%d" % (M, T0, T1)))
            r.append(Inst("v_mul_f32 v%d, s44, v%d" % (MC, M)))
        else:
            r.append(Inst("v_max3_f32 v%d, v%d, v%d, v%d" % (T0, T0, T1, M)))
            r.append(Inst("v_sub_f32 v%d, v%d, v%d" % (T1, M, T0)))
            r.append(Inst("v_mul_f32 v%d, s44, v%d" % (T1, T1)))
            r.append(Inst("v_exp_f32 v%d, v%d" % (AL, T1)))
            r.append(Inst("v_mov_b32 v%d, v%d" % (M, T0)))
            r.append(Inst("v_mul_f32 v%d, s44, v%d" % (MC, T0)))
            r.append(Inst("v_mul_f32 v%d, v%d, v%d" % (L, L, AL)))
        return r

    def rescale():
        return [Inst("v_mul_f32 v%d, v%d, v%d" % (O + k, O + k, AL)) for k in range(64)]

    def k_advance():
        r = [Inst("s_add_u32 s49, s47, 0x8000"), Inst("s_cmp_ge_u32 s49, 0x%x" % LDS_BYTES),
             Inst("s_cselect_b32 s49, s46, s45"), Inst("s_add_u32 s47, s47, s49")]
        for t in range(8):
            r.append(Inst("v_add_u32 v%d, s49, v%d" % (KA + t, KA + t)))
        return r

    def v_advance():
        r = [Inst("s_add_u32 s50, s48, 0x8000"), Inst("s_cmp_ge_u32 s50, 0x%x" % LDS_BYTES),
             Inst("s_cselect_b32 s50, s46, s45"), Inst("s_add_u32 s48, s48, s50")]
        for j in range(4):
            r.append(Inst("v_add_u32 v%d, s50, v%d" % (VA + j, VA + j)))
        return r

    kr = k_reads()
    mm = qk_mfmas(S[0])
    zero = [Inst("v_mov_b32 v%d, 0" % (O + k)) for k in range(64)] + [Inst("v_mov_b32 v%d, 0" % L), Inst("v_mov_b32 v%d, 1.0" % AL)]
    for i in kr[:8]:
        p.add(i)
    seq = []
    zi = 0
    for n in range(16):
        seq.append(mm[n])
        if n + 8 < 16:
            seq.append(kr[n + 8])
        seq += zero[zi:zi + 4]; zi += 4
    seq += zero[zi:]
    for i in seq:
        p.add(i)
    for t in range(8):
        p("v_add_u32 v%d, 0x%x, v%d" % (KA + t, SLOT, KA + t))
    for i in max_update(S[0], first=True):
        p.add(i)
    p("s_waitcnt lgkmcnt(0)")

    def iteration(par, qk=True):
        sc, sn = S[par], S[1 - par]
        stamp(p, opts)
        p("s_barrier")
        stamp(p, opts)
        vrd = v_reads()
        pv = pv_mfmas(sc)
        e0, e1, e2, e3 = [exp_group(sc, g) for g in range(4)]
        rs = rescale()
        seq_ref = []
        out = []
        if qk:
            kr = k_reads()
            mm = qk_mfmas(sn)
            ref = []
            for n in range(16):
                ref.append(kr[n]); ref.append(mm[n])
            adv = k_advance()
            seq_ref = e0 + e1 + rs + ref + adv
            out += kr[:8]
            fill = e0 + e1 + rs + vrd[:16]
            ph1 = interleave(mm, fill, lead=40)
            res = []
            cnt = 0
            for i in ph1:
                res.append(i)
                if i.kind == "mfma":
                    if cnt + 8 < 16:
                        res.append(kr[cnt + 8])
                    cnt += 1
            out += res
            out += adv
        else:
            seq_ref = e0 + e1 + rs
            out += vrd[:16] + e0 + e1 + rs
        mx = max_update(sn) if qk else []
        va = v_advance() if qk else []
        ref2 = list(e2 + e3)
        for n in range(16):
            ref2 += [vrd[2 * n], vrd[2 * n + 1], pv[n]]
        seq_ref = seq_ref + ref2 + mx + va
        res = []
        a = interleave(pv[:8], e2 + e3[:len(e3) // 2], lead=0)
        bpart = interleave(pv[8:12], e3[len(e3) // 2:], lead=0)
        cpart = interleave(pv[12:], mx, lead=0)
        cnt = 0
        for i in a + bpart + cpart:
            res.append(i)
            if i.kind == "mfma":
                if cnt + 8 < 16:
                    res.append(vrd[2 * (cnt + 8)]); res.append(vrd[2 * (cnt + 8) + 1])
                cnt += 1
        out += res + va
        check_order(seq_ref, out)
        for i in out:
            p.add(i)
        p("s_waitcnt lgkmcnt(0)")

    p("s_mov_b32 s51, 7")
    p.label("K1_LOOP")
    iteration(0)
    iteration(1)
    p("s_sub_u32 s51, s51, 1")
    p("s_cmp_lg_u32 s51, 0")
    p("s_cbranch_scc1 K1_LOOP")
    iteration(0)
    iteration(1, qk=False)
    stamp(p, opts)
    p("v_mov_b32 v%d, v%d" % (T1, L))
    p("v_permlane32_swap_b32 v%d, v%d" % (L, T1))
    p("v_add_f32 v%d, v%d, v%d" % (L, L, T1))
    p("v_rcp_f32 v%d, v%d" % (AL, L))
    p("s_lshl_b32 s40, s15, 2")
    p("s_add_u32 s40, s40, s14")
    p("s_lshl_b32 s40, s40, 8")
    p("s_lshl_b32 s41, s16, 3")
    p("s_add_u32 s40, s40, s41")
    p("s_lshl_b32 s40, s40, 10")
    p("s_add_u32 s41, s40, 4096")
    p("v_lshlrev_b32 v%d, 4, %s" % (T0, lane))
    for u in range(8):
        base = O + 8 * u
        for k in range(8):
            p("v_mul_f32 v%d, v%d, v%d" % (base + k, base + k, AL))
        dst = Q + 4 * u
        for k in range(4):
            p("v_cvt_pk_bf16_f32 v%d, v%d, v%d" % (dst + k, base + 2 * k, base + 2 * k + 1))
        p("buffer_store_dwordx4 %s, v%d, s[36:39], %s offen offset:%d" % (vr(dst, 4), T0, "s40" if u < 4 else "s41", (u % 4) * 1024))
    if opts.get("stamp"):
        p("s_waitcnt vmcnt(0)")
    stamp(p, opts)
    stamp_flush(p, opts, None, lane, 1)


def gen_k2(p, opts):
    K = "oproj_kernel"
    p.raw(".globl %s\n.p2align 8\n.type %s,@function" % (K, K))
    p.label(K)
    p.reset_tracking()
    p("s_cmp_ge_u32 s2, 256")
    p("s_cbranch_scc1 K2_END")
    p("s_load_dwordx4 s[4:7], s[0:1], 32")
    p("s_load_dwordx2 s[12:13], s[0:1], 56")
    p("v_lshrrev_b32 v1, 6, v0")
    p("v_and_b32 v0, 63, v0")
    p("v_readfirstlane_b32 s14, v1")
    p("s_and_b32 s15, s2, 7")
    p("s_lshr_b32 s16, s2, 3")
    p("s_lshr_b32 s17, s15, 1")
    p("s_lshl_b32 s17, s17, 2")
    p("s_lshr_b32 s18, s16, 3")
    p("s_add_u32 s17, s17, s18")
    p("s_and_b32 s18, s15, 1")
    p("s_lshl_b32 s18, s18, 3")
    p("s_and_b32 s19, s16, 7")
    p("s_add_u32 s18, s18, s19")
    p("s_waitcnt lgkmcnt(0)")
    p.reset_tracking()
    p("s_lshl_b32 s19, s18, 7")
    p("s_add_u32 s20, s4, s19")
    p("s_addc_u32 s21, s5, 0")
    p("s_sub_u32 s22, 0x800000, s19")
    p("s_mov_b32 s23, 0x20000")
    p("s_mov_b32 s24, s12")
    p("s_mov_b32 s25, s13")
    p("s_mov_b32 s26, 0x800000")
    p("s_mov_b32 s27, 0x20000")
    p("s_mov_b32 s28, s6")
    p("s_mov_b32 s29, s7")
    p("s_mov_b32 s30, 0x200000")
    p("s_mov_b32 s31, 0x20000")
    p("v_mov_b32 v151, v0")
    ACC = 0
    OB = 64
    WF = 128
    VOFF_W0, VOFF_W1, VOFF_O, WA = 144, 145, 146, 148
    DEPTH = 8
    p("s_lshl_b32 s40, s14, 14")
    p("v_lshrrev_b32 v1, 3, v0")
    p("v_and_b32 v2, 7, v0")
    p("v_bfe_u32 v3, v0, 4, 1")
    p("v_lshlrev_b32 v3, 2, v3")
    p("v_xor_b32 v2, v2, v3")
    p("v_lshlrev_b32 v2, 4, v2")
    p("v_lshl_add_u32 v%d, v1, 11, v2" % VOFF_W0)
    p("v_add_u32 v%d, %d, v%d" % (VOFF_W1, 8 * 2048 - 1024, VOFF_W0))
    p("v_lshlrev_b32 v%d, 4, v0" % VOFF_O)
    p("v_lshrrev_b32 v1, 5, v0")
    p("v_bfe_u32 v2, v0, 2, 2")
    p("v_bfe_u32 v3, v0, 4, 1")
    p("v_and_b32 v4, 3, v0")
    p("v_lshlrev_b32 v4, 3, v4")
    p("v_lshl_add_u32 v4, v3, 5, v4")
    p("v_lshl_add_u32 v5, v1, 2, v2")
    p("v_lshl_add_u32 v5, v5, 7, v4")
    p("v_add_u32 v5, s40, v5")
    p("v_lshrrev_b32 v6, 1, v2")
    for j in range(2):
        p("v_xor_b32 v7, %d, v6" % j)
        p("v_lshl_add_u32 v%d, v7, 6, v5" % (WA + j))
    p("s_lshl_b32 s41, s14, 20")
    p("s_lshl_b32 s42, s17, 9")
    p("s_lshl_b32 s43, s14, 5")
    p("s_add_u32 s42, s42, s43")
    p("s_lshl_b32 s42, s42, 10")
    p("s_add_u32 s43, s42, 0x40000")

    p("s_and_b32 s52, s16, 7")
    p("s_lshl_b32 s52, s52, 2")
    p("s_lshr_b32 s53, s16, 3")
    p("s_lshl_b32 s53, s53, 3")
    p("s_add_u32 s52, s52, s53")
    if not opts.get("rot2", 1):
        p("s_mov_b32 s52, 0")
    pw = " nt" if opts.get("ntw", 0) else ""
    po = " nt" if opts.get("nto", 0) else ""

    def issue(ks):
        sl = ks % DEPTH
        p("s_add_u32 m0, s40, %d" % (sl * 2048))
        p("s_add_u32 s53, s52, %d" % ks)
        p("s_and_b32 s53, s53, 31")
        p("s_lshl_b32 s54, s53, 15")
        p("s_add_u32 s54, s54, s41")
        p("buffer_load_dwordx4 v%d, s[20:23], s54 offen%s lds" % (VOFF_W0, pw), tokens_out=[("w", ks)], tokens_in=[("wr", ks - DEPTH)])
        p("buffer_load_dwordx4 v%d, s[20:23], s54 offen offset:1024%s lds" % (VOFF_W1, pw), tokens_out=[("w", ks)])
        p("s_lshl_b32 s53, s53, 10")
        p("s_add_u32 s55, s53, s42")
        p("s_add_u32 s56, s53, s43")
        p("buffer_load_dwordx4 %s, v%d, s[24:27], s55 offen%s" % (vr(OB + 8 * sl, 4), VOFF_O, po))
        p("buffer_load_dwordx4 %s, v%d, s[24:27], s56 offen%s" % (vr(OB + 8 * sl + 4, 4), VOFF_O, po))

    def reads(ks):
        sl = ks % DEPTH
        wf = WF + 8 * (ks % 2)
        for j in range(2):
            for u in range(2):
                p("ds_read_b64_tr_b16 %s, v%d offset:%d" % (vr(wf + 4 * j + 2 * u, 2), WA + j, sl * 2048 + 8 * u * 128),
                  tokens_in=[("w", ks)], tokens_out=[("wr", ks)])

    def mfmas(ks):
        sl = ks % DEPTH
        wf = WF + 8 * (ks % 2)
        for j in range(2):
            for rb in range(2):
                a = ACC + 16 * (2 * j + rb)
                c = "0" if ks == 0 else vr(a, 16)
                p("v_mfma_f32_32x32x16_bf16 %s, %s, %s, %s" % (vr(a, 16), vr(wf + 4 * j, 4), vr(OB + 8 * sl + 4 * rb, 4), c))

    NK = 32
    stamp_init(p, opts)
    stamp(p, opts)
    for ks in range(DEPTH):
        issue(ks)
    reads(0)
    for ks in range(NK):
        stamp(p, opts)
        if ks + 1 < NK:
            reads(ks + 1)
        mfmas(ks)
        if ks + DEPTH < NK:
            issue(ks + DEPTH)
    p("s_waitcnt vmcnt(0) lgkmcnt(0)")
    p("s_barrier")
    QS = 1056
    WS = 16 * QS
    p("s_mul_i32 s44, s14, %d" % WS)
    p("v_lshlrev_b32 v150, 4, v151")
    p("v_add_u32 v150, s44, v150")
    for q in range(16):
        p("ds_write_b128 v150, %s offset:%d" % (vr(ACC + 4 * q, 4), q * QS))
    p("s_waitcnt lgkmcnt(0)")
    p("s_barrier")
    p("v_lshrrev_b32 v1, 3, v151")
    p("s_lshl_b32 s44, s14, 3")
    p("v_add_u32 v1, s44, v1")
    p("v_and_b32 v2, 7, v151")
    p("v_lshrrev_b32 v3, 2, v2")
    p("v_and_b32 v4, 3, v2")
    p("v_lshrrev_b32 v5, 5, v1")
    p("v_lshl_add_u32 v3, v3, 1, v5")
    p("v_lshl_add_u32 v3, v3, 2, v4")
    p("v_mul_u32_u24 v3, %d, v3" % QS)
    p("v_and_b32 v6, 31, v1")
    p("v_lshl_add_u32 v3, v6, 4, v3")
    p("v_add_u32 v7, %d, v3" % (4 * WS))
    for w in range(8):
        a = 3 if w < 4 else 7
        p("ds_read_b128 %s, v%d offset:%d" % (vr(64 + 8 * w, 4), a, (w % 4) * WS))
        p("ds_read_b128 %s, v%d offset:%d" % (vr(64 + 8 * w + 4, 4), a, (w % 4) * WS + 512))
    for w in range(1, 8):
        for k in range(8):
            p("v_add_f32 v%d, v%d, v%d" % (64 + k, 64 + k, 64 + 8 * w + k))
    for k in range(4):
        p("v_cvt_pk_bf16_f32 v%d, v%d, v%d" % (8 + k, 64 + 2 * k, 64 + 2 * k + 1))
    p("s_lshl_b32 s44, s17, 6")
    p("v_add_u32 v1, s44, v1")
    p("v_lshlrev_b32 v1, 11, v1")
    p("v_lshl_add_u32 v1, v2, 4, v1")
    p("s_lshl_b32 s44, s18, 7")
    p("buffer_store_dwordx4 v[8:11], v1, s[28:31], s44 offen")
    if opts.get("stamp"):
        p("s_waitcnt vmcnt(0)")
    stamp(p, opts)
    stamp_flush(p, opts, None, "v151", 2)
    p.label("K2_END")
    p("s_endpgm")


HEADER = open("cdna_kernels/%s.s.ref" % NAME).read().split("; Override launch")[0]


def kd(name, vgpr, sgpr=96):
    return """.p2align 6
.amdhsa_kernel %s
  .amdhsa_next_free_vgpr %d
  .amdhsa_next_free_sgpr %d
  .amdhsa_accum_offset %d
  .amdhsa_group_segment_fixed_size 0
  .amdhsa_kernarg_size 64
  .amdhsa_user_sgpr_count 2
  .amdhsa_user_sgpr_kernarg_segment_ptr 1
  .amdhsa_system_sgpr_workgroup_id_x 1
.end_amdhsa_kernel
""" % (name, vgpr, sgpr, min(256, (vgpr + 3) // 4 * 4))


def build(opts):
    p = Prog()
    gen_k1(p, opts)
    gen_k2(p, opts)
    n = p.pad_hazards()
    sys.stderr.write("hazard nop states inserted: %d\n" % n)
    s = HEADER
    s += "; @launch kernel=attn_kernel grid=(256,1,1) block=(512,1,1) lds=%d\n" % LDS_BYTES
    s += "; @launch kernel=oproj_kernel grid=(256,1,1) block=(512,1,1) lds=%d\n" % (8 * 16 * 1056)
    s += '.amdgcn_target "amdgcn-amd-amdhsa--gfx950"\n.text\n'
    s += p.text()
    s += '.section .rodata,"a"\n'
    s += kd("attn_kernel", 256)
    s += kd("oproj_kernel", 256)
    return s


if __name__ == "__main__":
    out = sys.argv[1] if len(sys.argv) > 1 else "cdna_kernels/%s.s" % NAME
    opts = {}
    for a in sys.argv[2:]:
        k, v = a.split("=")
        opts[k] = int(v)
    open(out, "w").write(build(opts))
```

```python
import sys, math, struct
from asmlib import Prog, Inst, check_order
from gen import f32bits, vr, interleave, HEADER, kd, NAME

SLOT = 16384
LDS_BYTES = 160 * 1024
KBASE = 0
VBASE = 4 * SLOT
MISC = 9 * SLOT
F_LP = 0
F_CP = 16
F_C1 = 32
F_C2 = 36
F_G1 = 40
F_G2 = 44
F_NONCE = 48
FLAG_OFF = 48 << 20
STAMPV, STAMPV2 = 255, 254
PART_OFF = 16 << 20
SPIN_MAX = 1 << 18


def stamp_init(p, opts):
    if not opts.get("stamp"):
        return
    p("s_mov_b32 s59, 0")
    p("v_mov_b32 v%d, 0" % STAMPV)
    p("v_mov_b32 v%d, 0" % STAMPV2)


def stamp(p, opts, lvl=1):
    if opts.get("stamp", 0) < lvl:
        return
    p("s_memtime s[60:61]")
    p("s_memrealtime s[62:63]")
    p("s_waitcnt lgkmcnt(0)")
    p("s_mov_b32 m0, s59")
    p("s_nop 1")
    p("v_writelane_b32 v%d, s60, m0" % STAMPV)
    p("v_writelane_b32 v%d, %s, m0" % (STAMPV2, "s58" if opts.get("sp") else "s62"))
    p("s_add_u32 s59, s59, 1")


def stamp_flush(p, opts, tmp):
    if not opts.get("stamp"):
        return
    p("s_lshl_b32 s62, s2, 3")
    p("s_add_u32 s62, s62, s14")
    p("s_lshl_b32 s62, s62, 9")
    p("s_add_u32 s62, s62, 0x%x" % (64 << 20))
    p("s_mov_b32 s64, s12")
    p("s_mov_b32 s65, s13")
    p("s_mov_b32 s66, 0x10000000")
    p("s_mov_b32 s67, 0x20000")
    p("v_mbcnt_lo_u32_b32 v%d, -1, 0" % tmp)
    p("v_mbcnt_hi_u32_b32 v%d, -1, v%d" % (tmp, tmp))
    p("v_lshlrev_b32 v%d, 2, v%d" % (tmp, tmp))
    p("buffer_store_dword v%d, v%d, s[64:67], s62 offen" % (STAMPV, tmp))
    p("buffer_store_dword v%d, v%d, s[64:67], s62 offen offset:256" % (STAMPV2, tmp))


_uid = [0]


def uid():
    _uid[0] += 1
    return _uid[0]


def gen_kernel(p, opts):
    K = NAME + "_kernel"
    p.raw(".globl %s\n.p2align 8\n.type %s,@function" % (K, K))
    p.label(K)
    p("s_cmp_ge_u32 s2, 256")
    p("s_cbranch_scc1 K1_END")
    p("s_load_dwordx4 s[4:7], s[0:1], 0")
    p("s_load_dwordx4 s[8:11], s[0:1], 16")
    p("s_load_dwordx4 s[68:71], s[0:1], 32")
    p("s_load_dwordx2 s[72:73], s[0:1], 48")
    p("s_load_dwordx2 s[12:13], s[0:1], 56")
    p("v_lshrrev_b32 v1, 6, v0")
    p("v_and_b32 v0, 63, v0")
    p("v_readfirstlane_b32 s14, v1")
    p("s_and_b32 s40, s2, 7")
    p("s_lshr_b32 s41, s2, 3")
    p("s_lshr_b32 s15, s40, 2")
    p("s_lshl_b32 s15, s15, 2")
    p("s_lshr_b32 s42, s41, 3")
    p("s_add_u32 s15, s15, s42")
    p("s_and_b32 s18, s40, 3")
    p("s_and_b32 s19, s41, 7")
    p("s_lshl_b32 s16, s18, 3")
    p("s_add_u32 s16, s16, s19")
    p("s_lshl_b32 s17, s15, 5")
    p("s_add_u32 s17, s17, s16")
    p("v_lshlrev_b32 v2, 2, v0")
    p("v_add_u32 v2, %d, v2" % MISC)
    p("v_mov_b32 v3, 0")
    p("ds_write_b32 v2, v3")
    p("s_waitcnt lgkmcnt(0)")
    p.reset_tracking()
    p("s_mov_b32 s36, s12")
    p("s_mov_b32 s37, s13")
    p("s_mov_b32 s38, 0x4000000")
    p("s_mov_b32 s39, 0x20000")
    p("s_mov_b32 s76, s72")
    p("s_mov_b32 s77, s73")
    p("s_mov_b32 s78, 256")
    p("s_mov_b32 s79, 0x20000")
    p("s_mov_b32 s58, %d" % SPIN_MAX)
    p("s_barrier")
    stamp_init(p, opts)
    stamp(p, opts)
    p("s_cmp_ge_u32 s14, 4")
    p("s_cbranch_scc1 K1_LOADER")
    gen_compute(p, opts)
    p.label("K1_LOADER")
    p.reset_tracking()
    gen_loader(p, opts)
    p.label("K1_END")
    p("s_endpgm")


def gen_loader(p, opts):
    CAP = opts.get("cap", 12)
    if opts.get("lprio"):
        p("s_setprio %d" % opts["lprio"])
    p("s_sub_u32 s40, s14, 4")
    p("s_lshl_b32 s41, s40, 12")
    p("s_mov_b32 s45, 0")
    p("s_mov_b32 s48, 0")
    p("s_lshl_b32 s42, s15, 18")
    p("s_add_u32 s20, s4, s42")
    p("s_addc_u32 s21, s5, 0")
    p("s_mov_b32 s22, 0x40000")
    p("s_mov_b32 s23, 0x20000")
    p("s_lshl_b32 s42, s16, 8")
    p("s_add_u32 s24, s10, s42")
    p("s_addc_u32 s25, s11, 0")
    p("s_sub_u32 s26, 0x800000, s42")
    p("s_mov_b32 s27, 0x20000")
    p("s_lshl_b32 s42, s17, 18")
    p("s_add_u32 s28, s6, s42")
    p("s_addc_u32 s29, s7, 0")
    p("s_mov_b32 s30, 0x40000")
    p("s_mov_b32 s31, 0x20000")
    p("s_add_u32 s32, s8, s42")
    p("s_addc_u32 s33, s9, 0")
    p("s_mov_b32 s34, 0x40000")
    p("s_mov_b32 s35, 0x20000")
    p("s_lshl_b32 s42, s18, 21")
    p("s_lshl_b32 s43, s19, 8")
    p("s_add_u32 s42, s42, s43")
    p("s_add_u32 s80, s68, s42")
    p("s_addc_u32 s81, s69, 0")
    p("s_sub_u32 s82, 0x800000, s42")
    p("s_mov_b32 s83, 0x20000")
    p("v_lshrrev_b32 v1, 4, v0")
    p("v_and_b32 v2, 15, v0")
    p("v_lshrrev_b32 v3, 3, v0")
    p("v_and_b32 v4, 7, v0")
    p("v_mov_b32 v9, %d" % MISC)
    p("s_lshl_b32 s42, s40, 2")
    p("v_add_u32 v8, s42, v9")
    for ii in range(4):
        p("v_add_u32 v5, %d, v1" % (4 * ii))
        p("v_xor_b32 v5, v5, v2")
        p("v_lshlrev_b32 v5, 4, v5")
        p("v_lshl_add_u32 v5, v1, 8, v5")
        p("v_add_u32 v%d, s41, v5" % (10 + ii))
    p("v_lshlrev_b32 v5, 2, v1")
    p("v_xor_b32 v5, v5, v2")
    p("v_lshlrev_b32 v6, 4, v5")
    p("v_lshl_add_u32 v5, v1, 8, v6")
    p("v_add_u32 v14, s41, v5")
    p("v_lshlrev_b32 v5, 4, v0")
    p("v_add_u32 v15, s41, v5")
    p("s_lshl_b32 s42, s40, 4")
    for ii in range(4):
        p("v_add_u32 v5, s42, v1")
        p("v_add_u32 v5, %d, v5" % (4 * ii))
        p("v_lshl_add_u32 v7, v5, 13, v6")
        p("v_lshl_add_u32 v5, v5, 11, v6")
        if ii:
            p("v_subrev_u32 v7, %d, v7" % (ii * 1024))
            p("v_subrev_u32 v5, %d, v5" % (ii * 1024))
        p("v_mov_b32 v%d, v7" % (16 + ii))
        p("v_mov_b32 v%d, v5" % (24 + ii))
    p("s_lshl_b32 s42, s40, 5")
    for ii in range(4):
        p("v_add_u32 v5, %d, v1" % (4 * (ii & 1)))
        p("v_xor_b32 v5, v5, v4")
        p("v_lshlrev_b32 v5, 4, v5")
        p("v_add_u32 v7, s42, v3")
        p("v_add_u32 v7, %d, v7" % (8 * ii))
        p("v_lshl_add_u32 v5, v7, 11, v5")
        if ii:
            p("v_subrev_u32 v5, %d, v5" % (ii * 1024))
        p("v_mov_b32 v%d, v5" % (20 + ii))
    p("s_lshl_b32 s52, s19, 1")
    p("s_and_b32 s53, s15, 3")
    p("s_lshl_b32 s53, s53, 2")
    p("s_add_u32 s52, s52, s53")
    p("s_lshl_b32 s54, s19, 1")
    p("s_lshl_b32 s55, s18, 3")
    p("s_lshl_b32 s42, s15, 5")
    p("s_add_u32 s55, s55, s42")
    p("s_lshl_b32 s55, s55, 15")

    items = []
    for s in range(16):
        items.append(("X%d" % s, "X", s, s, KBASE + (s % 4) * SLOT, s - 3))
        items.append(("W%d" % s, "W", s, s, VBASE + (s % 4) * SLOT, s - 3))
    items.append(("K0", "K", 0, 16, KBASE, 13))
    for i in range(16):
        if i < 15:
            j = i + 1
            items.append(("K%d" % j, "K", j, 17 + i, KBASE + (j % 4) * SLOT, 13 + j))
        items.append(("V%d" % i, "V", i, 17 + i, VBASE + (i % 4) * SLOT, (13 + i) if i < 4 else (14 + i)))
    for t in range(5):
        items.append(("Z%d" % t, "Z", t, 33 + t, VBASE + ((t + 4) % 5) * SLOT, 0 if t == 0 else 29 + t))
    tail = []
    for t in range(2, 16):
        tail.append(("O%d" % t, "O", t, 33 + t, KBASE + (t % 4) * SLOT, {2: 31, 3: 32, 4: 29, 5: 30}.get(t, 30 + t)))
        if t + 3 < 16:
            z = t + 3
            tail.append(("Z%d" % z, "Z", z, 33 + z, VBASE + ((z + 4) % 5) * SLOT, 29 + z))
    allitems = items + tail
    need_of = {}
    for it in allitems:
        need_of.setdefault(it[3], []).append(it[0])
    issued = set()
    published = [0]

    def try_publish():
        adv = False
        while published[0] < 49:
            names = need_of.get(published[0], [])
            if not all(n in issued for n in names):
                break
            if any(("tile", n) in r for n in names for r in p.vm):
                break
            published[0] += 1
            adv = True
        if adv:
            p("s_max_u32 s48, s48, %d" % published[0])
            p("v_mov_b32 v7, s48")
            p("ds_write_b32 v8, v7 offset:%d" % F_LP)

    def wait_cp(need):
        if need <= 0:
            return
        u = uid()
        p.auto_wait = False
        p("s_cmp_ge_u32 s45, %d" % need)
        p("s_cbranch_scc1 CPOK_%d" % u)
        p("ds_read_b128 v[4:7], v9 offset:%d" % F_CP)
        p("s_waitcnt lgkmcnt(0)")
        p("v_min_u32 v4, v4, v5")
        p("v_min3_u32 v4, v4, v6, v7")
        p("v_readfirstlane_b32 s45, v4")
        p("s_cmp_ge_u32 s45, %d" % need)
        p("s_cbranch_scc1 CPOK_%d" % u)
        full = published[0]
        while full < 49 and all(n in issued for n in need_of.get(full, [])):
            full += 1
        if full > published[0] and p.vm:
            saved = list(p.vm)
            st = published[0]
            while st < full:
                names = need_of.get(st, [])
                last = -1
                for i, r in enumerate(saved):
                    if any(("tile", n) in r for n in names):
                        last = i
                if last >= 0:
                    p.items.append(Inst("s_waitcnt vmcnt(%d)" % (len(saved) - 1 - last)))
                    p.items.append(Inst("s_max_u32 s48, s48, %d" % (st + 1)))
                    p.items.append(Inst("v_mov_b32 v7, s48"))
                    p.items.append(Inst("ds_write_b32 v8, v7 offset:%d" % F_LP))
                st += 1
        p.label("CPW_%d" % u)
        p("ds_read_b128 v[4:7], v9 offset:%d" % F_CP)
        p("s_waitcnt lgkmcnt(0)")
        p("v_min_u32 v4, v4, v5")
        p("v_min3_u32 v4, v4, v6, v7")
        p("v_readfirstlane_b32 s45, v4")
        p("s_cmp_ge_u32 s45, %d" % need)
        p("s_cbranch_scc1 CPOK_%d" % u)
        p("s_sleep %d" % opts.get("cpsleep", 1))
        p("s_sub_u32 s58, s58, 1")
        p("s_cmp_gt_i32 s58, 0")
        p("s_cbranch_scc1 CPW_%d" % u)
        p.label("CPOK_%d" % u)
        p.auto_wait = True
        p.lgkm = []

    def soff(kind, idx):
        if kind in "XW":
            p("s_add_u32 s43, s52, %d" % idx)
            p("s_and_b32 s43, s43, 15")
            p("s_lshl_b32 s43, s43, %d" % (7 if kind == "X" else 19))
        elif kind in "KV":
            p("s_mov_b32 s43, %d" % (idx * 16384))
        elif kind == "Z":
            p("s_add_u32 s43, s54, %d" % idx)
            p("s_and_b32 s43, s43, 15")
            p("s_lshl_b32 s43, s43, 17")
        else:
            p("s_add_u32 s43, s54, %d" % idx)
            p("s_and_b32 s43, s43, 15")
            p("s_lshl_b32 s43, s43, 14")
            p("s_add_u32 s43, s43, s55")

    def issue(it):
        name, kind, idx, need, lds, cpn = it
        pend = [n for st in range(published[0], min(cpn, 49)) for n in need_of.get(st, [])]
        assert all(n in issued for n in pend), (name, pend)
        if pend:
            p.need([("tile", n) for n in pend])
            try_publish()
        wait_cp(cpn)
        if len(p.vm) + 4 > CAP:
            p("s_waitcnt vmcnt(%d)" % (CAP - 4))
            try_publish()
        p("s_add_u32 m0, s41, %d" % lds)
        soff(kind, idx)
        for ii in range(4):
            if (kind == "X" and opts.get("skipx")) or (kind == "W" and opts.get("skipw")):
                continue
            v = {"X": 20 + ii, "W": 16 + ii, "K": 10 + ii, "V": 14, "Z": 24 + ii, "O": 15}[kind]
            srd = {"X": "s[20:23]", "W": "s[24:27]", "K": "s[28:31]", "V": "s[32:35]", "Z": "s[80:83]", "O": "s[36:39]"}[kind]
            pol = {"K": " nt", "V": " nt", "O": " sc1"}.get(kind, "")
            p("buffer_load_dwordx4 v%d, %s, s43 offen offset:%d%s lds" % (v, srd, ii * 1024, pol), tokens_out=[("tile", name)])
        issued.add(name)

    p("s_cmp_lg_u32 s2, 0")
    p("s_cbranch_scc1 NONONCE")
    p("s_cmp_lg_u32 s14, 7")
    p("s_cbranch_scc1 NONONCE")
    p.auto_wait = False
    p("s_memrealtime s[46:47]")
    p("s_waitcnt lgkmcnt(0)")
    p("s_or_b32 s46, s46, 1")
    p("v_mov_b32 v4, s46")
    p("v_mov_b32 v5, s47")
    p("v_mov_b32 v6, 0")
    p("s_mov_b64 s[74:75], exec")
    p("s_mov_b64 exec, 1")
    p("buffer_store_dwordx2 v[4:5], v6, s[76:79], 0 offen sc1")
    p("s_mov_b64 exec, s[74:75]")
    p("s_waitcnt vmcnt(0)")
    p.auto_wait = True
    p.lgkm = []
    p.vm = []
    p.label("NONONCE")
    for it in items:
        issue(it)
        if it[0] == "K6":
            p("s_cmp_lg_u32 s14, 4")
            p("s_cbranch_scc1 NONCE_DONE")
            p.auto_wait = False
            p("v_mov_b32 v6, 0")
            p.label("NONCE_POLL")
            p.items.append(Inst("buffer_load_dwordx2 v[4:5], v6, s[76:79], 0 offen sc1"))
            p.items.append(Inst("s_waitcnt vmcnt(0)"))
            p("v_cmp_eq_u32 vcc, 0, v4")
            p("s_cbranch_vccz NONCE_OK")
            p("s_sleep 8")
            p("s_sub_u32 s58, s58, 1")
            p("s_cmp_gt_i32 s58, 0")
            p("s_cbranch_scc1 NONCE_POLL")
            p.label("NONCE_OK")
            p.items.append(Inst("ds_write_b64 v9, v[4:5] offset:%d" % F_NONCE))
            p("v_mov_b32 v28, v4")
            p("v_mov_b32 v29, v5")
            p.auto_wait = True
            p.label("NONCE_DONE")
        if it[0] in ("X0", "X8", "K0", "K8", "V15") or (opts.get("lst") and it[1] in "XW"):
            stamp(p, opts)
        if it[0] == "Z0" and opts.get("zpf", 1):
            p("s_and_b32 s56, s15, 3")
            p("s_mul_i32 s56, s56, 3")
            p("s_add_u32 s56, s56, s54")
            for n in range(3):
                if len(p.vm) + 4 > CAP:
                    p("s_waitcnt vmcnt(%d)" % (CAP - 4))
                    try_publish()
                p("s_add_u32 s43, s56, %d" % (5 + n))
                p("s_and_b32 s43, s43, 15")
                p("s_lshl_b32 s43, s43, 17")
                for ii in range(4):
                    p("buffer_load_dwordx4 %s, v%d, s[80:83], s43 offen offset:%d" % (vr(32 + 16 * n + 4 * ii, 4), 24 + ii, ii * 1024))
    p("s_waitcnt vmcnt(0)")
    try_publish()
    stamp(p, opts)
    p.auto_wait = False
    p("s_cmp_lg_u32 s14, 4")
    p("s_cbranch_scc1 RELAY1")
    p("s_lshl_b32 s42, s15, 2")
    p("s_add_u32 s42, s42, s18")
    p("s_lshl_b32 s42, s42, 7")
    p("s_add_u32 s42, s42, 0x%x" % FLAG_OFF)
    p("v_and_b32 v5, 7, v0")
    p("v_lshlrev_b32 v5, 3, v5")
    p.label("POLL1")
    p("buffer_load_dwordx2 v[6:7], v5, s[36:39], s42 offen sc1")
    p("s_waitcnt vmcnt(0)")
    p("v_cmp_ne_u64 vcc, v[6:7], v[28:29]")
    p("s_cbranch_vccz POLL1_OK")
    p("s_sleep %d" % opts.get("psleep", 2))
    p("s_sub_u32 s58, s58, 1")
    p("s_cmp_gt_i32 s58, 0")
    p("s_cbranch_scc1 POLL1")
    p.label("POLL1_OK")
    p("v_mov_b32 v7, 1")
    p("ds_write_b32 v9, v7 offset:%d" % F_G1)
    p("s_branch RELAY1_OK")
    p.label("RELAY1")
    p("s_sleep 1")
    p("ds_read_b32 v7, v9 offset:%d" % F_G1)
    p("s_waitcnt lgkmcnt(0)")
    p("v_readfirstlane_b32 s46, v7")
    p("s_sub_u32 s58, s58, 1")
    p("s_cmp_lt_i32 s58, 1")
    p("s_cbranch_scc1 RELAY1_OK")
    p("s_cmp_eq_u32 s46, 0")
    p("s_cbranch_scc1 RELAY1")
    p.label("RELAY1_OK")
    p("s_waitcnt lgkmcnt(0)")
    p.lgkm = []
    if opts.get("inv", 0):
        p("buffer_inv sc1")
        p("s_waitcnt vmcnt(0)")
    p.auto_wait = True
    p.vm = []
    stamp(p, opts)
    for it in tail:
        issue(it)
    while published[0] < 49:
        names = need_of.get(published[0], [])
        p.need([("tile", n) for n in names])
        try_publish()
    p("s_waitcnt vmcnt(0) lgkmcnt(0)")
    stamp(p, opts)
    p.auto_wait = False
    p("s_cmp_lg_u32 s14, 4")
    p("s_cbranch_scc1 LDONE")
    p.label("OWN2")
    p("s_sleep 2")
    p("ds_read_b32 v7, v9 offset:%d" % F_C2)
    p("s_waitcnt lgkmcnt(0)")
    p("v_readfirstlane_b32 s46, v7")
    p("s_sub_u32 s58, s58, 1")
    p("s_cmp_lt_i32 s58, 1")
    p("s_cbranch_scc1 OWN2_OK")
    p("s_cmp_lt_u32 s46, 4")
    p("s_cbranch_scc1 OWN2")
    p.label("OWN2_OK")
    p("s_lshl_b32 s42, s15, 3")
    p("s_add_u32 s42, s42, s19")
    p("s_lshl_b32 s42, s42, 7")
    p("s_add_u32 s42, s42, 0x%x" % (FLAG_OFF + 8192))
    p("v_and_b32 v5, 3, v0")
    p("v_lshlrev_b32 v5, 3, v5")
    p.label("POLL2")
    p("buffer_load_dwordx2 v[6:7], v5, s[36:39], s42 offen sc1")
    p("s_waitcnt vmcnt(0)")
    p("v_cmp_ne_u64 vcc, v[6:7], v[28:29]")
    p("s_cbranch_vccz POLL2_OK")
    p("s_sleep %d" % opts.get("psleep", 2))
    p("s_sub_u32 s58, s58, 1")
    p("s_cmp_gt_i32 s58, 0")
    p("s_cbranch_scc1 POLL2")
    p.label("POLL2_OK")
    p("v_mov_b32 v7, 1")
    p("ds_write_b32 v9, v7 offset:%d" % F_G2)
    p("s_waitcnt lgkmcnt(0)")
    p.label("LDONE")
    p.auto_wait = True
    stamp(p, opts)
    stamp_flush(p, opts, 5)


def gen_compute(p, opts):
    O = 0
    Q = 64
    S = [96, 128]
    NEGM = 160
    KF = 176
    NKF = 6
    VF = 200
    KA = 232
    VA = 240
    T0, T1, T2, T3 = 244, 245, 246, 247
    L, CNT, FA, CPA, X1, X2 = 248, 249, 250, 251, 252, 253
    XB = [64, 80]
    WB = [96, 160]
    XA, WA = 224, 228
    TA, TB, TC, TD = 232, 233, 234, 235
    THR = opts.get("thr", 8.0)
    if opts.get("cprio"):
        p("s_setprio %d" % opts["cprio"])
    p("v_mov_b32 v%d, v0" % X1)
    lane = "v%d" % X1
    p("v_mov_b32 v%d, %d" % (FA, MISC))
    p("s_lshl_b32 s40, s14, 2")
    p("v_add_u32 v%d, s40, v%d" % (CPA, FA))
    p("v_mov_b32 v%d, 0" % CNT)
    p("v_and_b32 v%d, 31, %s" % (TA, lane))
    p("v_lshrrev_b32 v%d, 5, %s" % (TB, lane))
    p("s_lshl_b32 s40, s14, 5")
    p("v_add_u32 v%d, s40, v%d" % (T0, TA))
    p("v_bfe_u32 v%d, v%d, 1, 3" % (T1, T0))
    for t in range(4):
        p("v_add_u32 v%d, %d, v%d" % (T2, 2 * t, TB))
        p("v_xor_b32 v%d, v%d, v%d" % (T2, T2, T1))
        p("v_lshlrev_b32 v%d, 4, v%d" % (T2, T2))
        p("v_lshl_add_u32 v%d, v%d, 7, v%d" % (XA + t, T0, T2))
    p("v_bfe_u32 v%d, %s, 2, 2" % (TC, lane))
    p("v_bfe_u32 v%d, %s, 4, 1" % (T1, lane))
    p("v_and_b32 v%d, 3, %s" % (T2, lane))
    p("v_lshlrev_b32 v%d, 3, v%d" % (T2, T2))
    p("v_lshl_add_u32 v%d, v%d, 5, v%d" % (TD, T1, T2))
    p("v_lshl_add_u32 v%d, v%d, 3, v%d" % (T2, TB, TC))
    p("v_lshl_add_u32 v%d, v%d, 8, v%d" % (T2, T2, TD))
    for j in range(4):
        p("v_xor_b32 v%d, %d, v%d" % (T0, j, TC))
        p("v_lshl_add_u32 v%d, v%d, 6, v%d" % (T0, T0, T2))
        p("v_add_u32 v%d, %d, v%d" % (WA + j, VBASE, T0))

    spins = []

    def flag_read():
        return Inst("ds_read_b128 %s, v%d offset:%d" % (vr(T0, 4), FA, F_LP))

    def flag_check(need):
        u = uid()
        p("v_min_u32 v%d, v%d, v%d" % (T0, T0, T1))
        p("v_min3_u32 v%d, v%d, v%d, v%d" % (T0, T0, T2, T3))
        p("v_readfirstlane_b32 s53, v%d" % T0)
        p("s_cmp_ge_u32 s53, %s" % need)
        p("s_cbranch_scc0 SPIN_%d" % u)
        p.label("SPUN_%d" % u)
        spins.append((u, need))

    def done_step():
        p("v_add_u32 v%d, 1, v%d" % (CNT, CNT))
        p("ds_write_b32 v%d, v%d offset:%d" % (CPA, CNT, F_CP))

    def gemm_mfmas(s, first):
        xb, wb = XB[s % 2], WB[s % 2]
        m = []
        for t in range(4):
            for j in range(4):
                c = "0" if (first and t == 0) else vr(O + 16 * j, 16)
                m.append(Inst("v_mfma_f32_32x32x16_bf16 %s, %s, %s, %s" % (vr(O + 16 * j, 16), vr(wb + (t * 4 + j) * 4, 4), vr(xb + 4 * t, 4), c)))
        return m

    def gemm_step(rd, mm, last_flag=True):
        nxt = [flag_read()] if last_flag else []
        if not mm:
            for i in rd + nxt:
                p.add(i)
            p("s_waitcnt lgkmcnt(0)")
            done_step()
            return
        seq = []
        ri = 0
        for k, m in enumerate(mm[:13]):
            seq.append(m)
            seq += rd[ri:ri + 3]; ri += 3
        seq += rd[ri:] + nxt
        for i in seq:
            p.add(i)
        p.add(mm[13])
        p("s_waitcnt lgkmcnt(0)")
        done_step()
        p.add(mm[14])
        p.add(mm[15])

    def q_reads(s):
        off = (s % 4) * SLOT
        xb, wb = XB[s % 2], WB[s % 2]
        r = []
        for t in range(4):
            r.append(Inst("ds_read_b128 %s, v%d offset:%d" % (vr(xb + 4 * t, 4), XA + t, off)))
            for j in range(4):
                for u in range(2):
                    if opts.get("halfw") and j >= 2:
                        continue
                    r.append(Inst("ds_read_b64_tr_b16 %s, v%d offset:%d" % (vr(wb + (t * 4 + j) * 4 + 2 * u, 2), WA + j, off + (16 * t + 4 * u) * 256)))
        return r

    p.add(flag_read())
    for s in range(16):
        if opts.get("qst"):
            stamp(p, opts)
        flag_check(s + 1)
        stamp(p, opts, 2 if (s not in (0, 4, 8, 12) and not opts.get("qst")) else 1)
        gemm_step(q_reads(s), gemm_mfmas(s - 1, s == 1) if s else [])
    flag_check(17)
    stamp(p, opts)
    setup = []
    setup.append(Inst("v_and_b32 v%d, 15, %s" % (T1, lane)))
    for t in range(8):
        setup.append(Inst("v_add_u32 v%d, %d, v%d" % (T2, 2 * t, TB)))
        setup.append(Inst("v_xor_b32 v%d, v%d, v%d" % (T2, T2, T1)))
        setup.append(Inst("v_lshlrev_b32 v%d, 4, v%d" % (T2, T2)))
        setup.append(Inst("v_lshl_add_u32 v%d, v%d, 8, v%d" % (XA + t, TA, T2)))
    setup.append(Inst("v_lshl_add_u32 v%d, v%d, 2, v%d" % (T2, TB, TC)))
    setup.append(Inst("v_lshl_add_u32 v%d, v%d, 8, v%d" % (T2, T2, TD)))
    for j in range(4):
        setup.append(Inst("v_xor_b32 v%d, %d, v%d" % (T0, j, TC)))
        setup.append(Inst("v_lshl_add_u32 v%d, v%d, 6, v%d" % (T0, T0, T2)))
        setup.append(Inst("v_add_u32 v%d, %d, v%d" % (VA + j, VBASE, T0)))
    for t in range(8):
        setup.append(Inst("v_mov_b32 v%d, v%d" % (KA + t, XA + t)))
    mm = gemm_mfmas(15, False)
    for i in interleave(mm, setup):
        p.add(i)
    cval = (128 ** -0.5) * math.log2(math.e)
    p("s_mov_b32 s44, 0x%08x" % f32bits(cval))
    p("s_mov_b32 s54, 18")

    def k_reads(j):
        r = []
        for n in range(16):
            kb, t = n // 8, n % 8
            r.append(Inst("ds_read_b128 %s, v%d offset:%d" % (vr(KF + 4 * (n % NKF), 4), KA + t, (j % 4) * SLOT + kb * 8192)))
        return r

    kr0 = k_reads(0)
    for i in kr0[:NKF]:
        p.add(i)
    for t in range(8):
        base = O + 16 * (t // 2) + 8 * (t % 2)
        for k in range(8):
            p("v_mul_f32 v%d, s44, v%d" % (base + k, base + k))
        for k in range(4):
            p("v_cvt_pk_bf16_f32 v%d, v%d, v%d" % (Q + 4 * t + k, base + 2 * k, base + 2 * k + 1))
    for t in range(8):
        p("v_permlane32_swap_b32 v%d, v%d" % (Q + 4 * t + 0, Q + 4 * t + 2))
        p("v_permlane32_swap_b32 v%d, v%d" % (Q + 4 * t + 1, Q + 4 * t + 3))

    def regs(a, n):
        return [("v", a + k) for k in range(n)]

    def qk_mfmas(sb, first=False):
        m = []
        for n in range(16):
            kb, t = n // 8, n % 8
            c = ("0" if first else vr(NEGM, 16)) if t == 0 else vr(sb + 16 * kb, 16)
            extra = regs(KF + 4 * ((n + 1) % NKF), 4) if (n % 2 == 0 and opts.get("pairwait", 1)) else []
            m.append(Inst("v_mfma_f32_32x32x16_bf16 %s, %s, %s, %s" % (vr(sb + 16 * kb, 16), vr(KF + 4 * (n % NKF), 4), vr(Q + 4 * t, 4), c), tokens_in=extra))
        return m

    def v_reads(i):
        r = []
        for n in range(16):
            ks, j = n // 4, n % 4
            for u in range(2):
                r.append(Inst("ds_read_b64_tr_b16 %s, v%d offset:%d" % (vr(VF + 4 * (n % 8) + 2 * u, 2), VA + j, (i % 4) * SLOT + (16 * ks + 8 * u) * 256)))
        return r

    def pv_mfmas(sb):
        m = []
        for n in range(16):
            ks, j = n // 4, n % 4
            extra = regs(VF + 4 * ((n + 1) % 8), 4) if (n % 2 == 0 and opts.get("pairwait", 1)) else []
            m.append(Inst("v_mfma_f32_32x32x16_bf16 %s, %s, %s, %s" % (vr(O + 16 * j, 16), vr(VF + 4 * (n % 8), 4), vr(sb + 8 * ks, 4), vr(O + 16 * j, 16)), tokens_in=extra))
        return m

    def exp_group(sb, g):
        b = sb + 8 * g
        ex = [Inst("v_exp_f32 v%d, v%d" % (b + k, b + k)) for k in range(8)]
        ad = [Inst("v_add_f32 v%d, v%d, v%d" % (L, L, b + k)) for k in range(8)]
        cv = [Inst("v_cvt_pk_bf16_f32 v%d, v%d, v%d" % (b + k, b + 2 * k, b + 2 * k + 1)) for k in range(4)]
        r = ex + ad + cv
        o = []
        for k in range(8):
            o.append(ex[k])
            if k >= 1:
                o.append(ad[k - 1])
            if k >= 3 and k % 2 == 1:
                o.append(cv[(k - 3) // 2])
        o.append(ad[7])
        o.append(cv[3])
        check_order(r, o)
        return o

    def max_tree(sb):
        r = []
        r.append(Inst("v_max3_f32 v%d, v%d, v%d, v%d" % (X1, sb, sb + 1, sb + 2)))
        r.append(Inst("v_max3_f32 v%d, v%d, v%d, v%d" % (X2, sb + 16, sb + 17, sb + 18)))
        for k in range(3, 15, 2):
            r.append(Inst("v_max3_f32 v%d, v%d, v%d, v%d" % (X1, X1, sb + k, sb + k + 1)))
            r.append(Inst("v_max3_f32 v%d, v%d, v%d, v%d" % (X2, X2, sb + 16 + k, sb + 16 + k + 1)))
        r.append(Inst("v_max3_f32 v%d, v%d, v%d, v%d" % (X1, X1, sb + 15, sb + 31)))
        r.append(Inst("v_max_f32 v%d, v%d, v%d" % (X1, X1, X2)))
        return r

    mm = qk_mfmas(S[0], first=True)
    zero = [Inst("v_mov_b32 v%d, 0" % (O + k)) for k in range(64)] + [Inst("v_mov_b32 v%d, 0" % L)]
    seq = []
    zi = 0
    for n in range(16):
        seq.append(mm[n])
        if n + NKF < 16:
            seq.append(kr0[n + NKF])
        if n == 10:
            seq.append(flag_read())
        seq += zero[zi:zi + 4]; zi += 4
    seq += zero[zi:]
    for i in seq:
        p.add(i)
    p("s_waitcnt lgkmcnt(0)")
    done_step()
    for i in max_tree(S[0]):
        p.add(i)
    p("v_mov_b32 v%d, v%d" % (X2, X1))
    p("v_permlane32_swap_b32 v%d, v%d" % (X1, X2))
    p("v_max_f32 v%d, v%d, v%d" % (X1, X1, X2))
    for k in range(16):
        p("v_sub_f32 v%d, 0, v%d" % (NEGM + k, X1))
    for k in range(32):
        p("v_sub_f32 v%d, v%d, v%d" % (S[0] + k, S[0] + k, X1))

    rare_blocks = []

    def iteration(i, tag, qk=True, head=True):
        par = i % 2
        sc, sn = S[par], S[1 - par]
        stamp(p, opts, 2)
        dpv = pv_mfmas(sn)[12:] if head else []
        for d in dpv:
            d.tokens_in = []
        mt = max_tree(sc) if head else []
        if head:
            p.add(dpv[0])
            for x in mt[:4]:
                p.add(x)
        flag_check("s54")
        p("s_add_u32 s54, s54, 1")
        stamp(p, opts, 2)
        kr = k_reads(i + 1) if qk else []
        if head:
            pre = kr[:NKF]
            seq = list(pre[:3])
            fill = pre[3:] + mt[4:]
            per = (len(fill) + 1) // 2
            for k, m in enumerate(dpv[1:]):
                seq.append(m)
                if k < 2:
                    seq += fill[k * per:(k + 1) * per]
            last = seq.pop()
            cmpi = Inst("v_cmp_lt_f32 vcc, 0x%08x, v%d" % (f32bits(THR), X1))
            seq += [cmpi, last]
            check_order(pre + dpv[1:] + mt[4:] + [cmpi], seq)
            for x in seq:
                p.add(x)
            p("s_cbranch_vccnz RARE_%s" % tag)
            p.label("BACK_%s" % tag)
            rare_blocks.append((tag, sc))
        else:
            for x in kr[:NKF]:
                p.add(x)
        vrd = v_reads(i)
        pv = pv_mfmas(sc)
        e0, e1, e2, e3 = [exp_group(sc, g) for g in range(4)]
        out = []
        if qk:
            mm = qk_mfmas(sn)
            ref = []
            for n in range(16):
                if n >= NKF:
                    ref.append(kr[n])
                ref.append(mm[n])
            ref = []
            for n in range(16):
                if n % 2 == 0:
                    for q in (n, n + 1):
                        if q >= NKF:
                            ref.append(kr[q])
                ref.append(mm[n])
            h2 = opts.get("e2split", 8)
            seq_ref = e0 + e1 + e2[:h2] + ref
            fill = e0 + e1 + e2[:h2] + vrd[:16]
            ph1 = interleave(mm, fill, lead=opts.get("lead1", 16))
            res = []
            cnt = 0
            for x in ph1:
                res.append(x)
                if x.kind == "mfma":
                    if cnt + NKF < 16:
                        res.append(kr[cnt + NKF])
                    cnt += 1
            out += res
            rest_e2 = e2[h2:]
        else:
            seq_ref = e0 + e1
            out += vrd[:16] + e0 + e1
            rest_e2 = e2
        fr = [flag_read()]
        npv = 12 if qk else 16
        ref2 = list(rest_e2 + e3)
        for n in range(16):
            if n % 2 == 0:
                ref2 += vrd[2 * n:2 * n + 4]
            if n < npv:
                ref2.append(pv[n])
        seq_ref = seq_ref + ref2 + fr
        a = interleave(pv[:8], rest_e2 + e3[:len(e3) // 2], lead=0)
        bpart = interleave(pv[8:12], fr + e3[len(e3) // 2:], lead=0)
        res = []
        cnt = 0
        for x in a + bpart:
            res.append(x)
            if x.kind == "mfma":
                if cnt + 8 < 16:
                    res.append(vrd[2 * (cnt + 8)]); res.append(vrd[2 * (cnt + 8) + 1])
                cnt += 1
        out += res
        cpart = pv[12:] if not qk else []
        check_order(seq_ref, out + cpart)
        for x in out:
            p.add(x)
        p("s_waitcnt lgkmcnt(0)")
        done_step()
        for x in cpart:
            p.add(x)

    iteration(0, "A0", head=False)
    iteration(1, "A1")
    iteration(2, "A2")
    p("s_mov_b32 s51, 3")
    p.label("K1_LOOP")
    p.lgkm = [set()]
    stamp(p, opts)
    for i in range(3, 7):
        iteration(i, "L%d" % i)
    p("s_sub_u32 s51, s51, 1")
    p("s_cmp_lg_u32 s51, 0")
    p("s_cbranch_scc1 K1_LOOP")
    iteration(15, "Z", qk=False)
    stamp(p, opts)
    AL = X2
    p("v_mov_b32 v%d, v%d" % (X1, L))
    p("v_permlane32_swap_b32 v%d, v%d" % (L, X1))
    p("v_add_f32 v%d, v%d, v%d" % (L, L, X1))
    p("v_rcp_f32 v%d, v%d" % (AL, L))
    LN = L
    p("v_mbcnt_lo_u32_b32 v%d, -1, 0" % X1)
    p("v_mbcnt_hi_u32_b32 v%d, -1, v%d" % (X1, X1))
    p("v_lshlrev_b32 v%d, 4, v%d" % (LN, X1))
    p("s_lshl_b32 s40, s17, 15")
    p("s_lshl_b32 s41, s14, 12")
    p("s_add_u32 s40, s40, s41")
    p("s_add_u32 s41, s40, 16384")
    for u in range(8):
        base = O + 8 * u
        for k in range(8):
            p("v_mul_f32 v%d, v%d, v%d" % (base + k, base + k, AL))
        dst = Q + 4 * u
        for k in range(4):
            p("v_cvt_pk_bf16_f32 v%d, v%d, v%d" % (dst + k, base + 2 * k, base + 2 * k + 1))
        p("buffer_store_dwordx4 %s, v%d, s[36:39], %s offen offset:%d sc1" % (vr(dst, 4), LN, "s40" if u < 4 else "s41", (u % 4) * 1024))
    OA, VA2 = KA, KA + 4
    p("s_lshl_b32 s41, s14, 12")
    p("v_add_u32 v%d, s41, v%d" % (OA, LN))
    for j in range(4):
        p("v_add_u32 v%d, 0x10000, v%d" % (VA2 + j, VA + j))

    def signal(cnt_off, soffreg, tag):
        p("s_waitcnt vmcnt(0)")
        p("v_mov_b32 v%d, 1" % X1)
        p.auto_wait = False
        p("s_mov_b64 s[74:75], exec")
        p("s_mov_b64 exec, 1")
        p("ds_add_rtn_u32 v%d, v%d, v%d offset:%d" % (X2, FA, X1, cnt_off))
        p("ds_read_b64 %s, v%d offset:%d" % (vr(NV, 2), FA, F_NONCE))
        p("s_waitcnt lgkmcnt(0)")
        p("v_readfirstlane_b32 s53, v%d" % X2)
        p("s_cmp_lg_u32 s53, 3")
        p("s_cbranch_scc1 NOSIG_%s" % tag)
        p("v_mov_b32 v%d, 0" % X2)
        p("buffer_store_dwordx2 %s, v%d, s[36:39], %s offen sc1" % (vr(NV, 2), X2, soffreg))
        p.label("NOSIG_%s" % tag)
        p("s_mov_b64 exec, s[74:75]")
        p.auto_wait = True
        p.lgkm = []

    NV = KA + 2
    p("s_lshl_b32 s56, s15, 2")
    p("s_add_u32 s56, s56, s18")
    p("s_lshl_b32 s56, s56, 7")
    p("s_lshl_b32 s42, s19, 3")
    p("s_add_u32 s56, s56, s42")
    p("s_add_u32 s56, s56, 0x%x" % FLAG_OFF)
    p("s_lshl_b32 s57, s15, 3")
    p("s_add_u32 s57, s57, s19")
    p("s_lshl_b32 s57, s57, 7")
    p("s_lshl_b32 s42, s18, 3")
    p("s_add_u32 s57, s57, s42")
    p("s_add_u32 s57, s57, 0x%x" % (FLAG_OFF + 8192))

    def t_reads(t):
        zslot = (t + 4) % 5
        wa, woff = (VA, zslot * SLOT) if zslot < 4 else (VA2, 0)
        xb, wb = XB[t % 2], WB[t % 2]
        r = []
        for ks in range(4):
            if t >= 2:
                r.append(Inst("ds_read_b128 %s, v%d offset:%d" % (vr(xb + 4 * ks, 4), OA, (t % 4) * SLOT + ks * 1024)))
            for j in range(4):
                for u in range(2):
                    r.append(Inst("ds_read_b64_tr_b16 %s, v%d offset:%d" % (vr(wb + (ks * 4 + j) * 4 + 2 * u, 2), wa + j, woff + (16 * ks + 8 * u) * 256)))
        return r

    flag_check(34)
    gemm_step(t_reads(0), [])
    signal(F_C1, "s56", "S1")
    stamp(p, opts)
    for t in range(1, 16):
        flag_check(34 + t)
        stamp(p, opts, 1 if t in (2, 3, 8) else 2)
        gemm_step(t_reads(t), gemm_mfmas(t - 1, t == 1), last_flag=(t < 15))
    for m in gemm_mfmas(15, False):
        p.add(m)
    stamp(p, opts)
    p("s_lshl_b32 s40, s15, 5")
    p("s_add_u32 s40, s40, s19")
    p("s_lshl_b32 s40, s40, 16")
    p("s_add_u32 s40, s40, 0x%x" % PART_OFF)
    p("s_lshl_b32 s41, s14, 12")
    p("s_add_u32 s40, s40, s41")
    p("s_lshl_b32 s41, s18, 14")
    p("s_add_u32 s41, s41, s40")
    for j in range(4):
        p("s_cmp_eq_u32 s18, %d" % j)
        p("s_cbranch_scc1 SKIPST_%d" % j)
        p("s_add_u32 s42, s41, %d" % (j * 8 * 65536))
        for q in range(4):
            p("buffer_store_dwordx4 %s, v%d, s[36:39], s42 offen offset:%d sc1" % (vr(O + 16 * j + 4 * q, 4), LN, q * 1024))
        p.label("SKIPST_%d" % j)
    for j in range(4):
        p("s_cmp_lg_u32 s18, %d" % j)
        p("s_cbranch_scc1 SKIPMV_%d" % j)
        for k in range(16):
            p("v_mov_b32 v%d, v%d" % (64 + k, O + 16 * j + k))
        p.label("SKIPMV_%d" % j)
    signal(F_C2, "s57", "S2")
    stamp(p, opts)
    p("v_mbcnt_lo_u32_b32 v%d, -1, 0" % X1)
    p("v_mbcnt_hi_u32_b32 v%d, -1, v%d" % (X1, X1))
    p.auto_wait = False
    p.label("RELAY2")
    p("s_sleep 1")
    p("ds_read_b32 v%d, v%d offset:%d" % (T1, FA, F_G2))
    p("s_waitcnt lgkmcnt(0)")
    p("v_readfirstlane_b32 s53, v%d" % T1)
    p("s_sub_u32 s58, s58, 1")
    p("s_cmp_lt_i32 s58, 1")
    p("s_cbranch_scc1 RELAY2_OK")
    p("s_cmp_eq_u32 s53, 0")
    p("s_cbranch_scc1 RELAY2")
    p.label("RELAY2_OK")
    p.auto_wait = True
    p.lgkm = []
    stamp(p, opts)
    p("s_lshl_b32 s41, s18, 19")
    p("s_add_u32 s41, s41, s40")
    for r in range(1, 4):
        p("s_add_u32 s42, s18, %d" % r)
        p("s_and_b32 s42, s42, 3")
        p("s_lshl_b32 s42, s42, 14")
        p("s_add_u32 s42, s42, s41")
        for q in range(4):
            p("buffer_load_dwordx4 %s, v%d, s[36:39], s42 offen offset:%d sc1" % (vr(96 + 16 * (r - 1) + 4 * q, 4), LN, q * 1024))
    p("s_mov_b32 s84, s70")
    p("s_mov_b32 s85, s71")
    p("s_mov_b32 s86, 0x200000")
    p("s_mov_b32 s87, 0x20000")
    p("v_and_b32 v%d, 31, v%d" % (T0, X1))
    p("v_lshrrev_b32 v%d, 5, v%d" % (T1, X1))
    p("v_lshlrev_b32 v%d, 11, v%d" % (T0, T0))
    p("v_lshl_add_u32 v%d, v%d, 4, v%d" % (T0, T1, T0))
    p("s_lshl_b32 s42, s15, 2")
    p("s_add_u32 s42, s42, s14")
    p("s_lshl_b32 s42, s42, 16")
    p("s_lshl_b32 s43, s19, 8")
    p("s_add_u32 s42, s42, s43")
    p("s_lshl_b32 s43, s18, 6")
    p("s_add_u32 s42, s42, s43")
    for r in range(3):
        for k in range(16):
            p("v_add_f32 v%d, v%d, v%d" % (64 + k, 64 + k, 96 + 16 * r + k))
    for k in range(8):
        p("v_cvt_pk_bf16_f32 v%d, v%d, v%d" % (80 + k, 64 + 2 * k, 64 + 2 * k + 1))
    for pr in range(2):
        p("v_permlane32_swap_b32 v%d, v%d" % (80 + 4 * pr, 80 + 4 * pr + 2))
        p("v_permlane32_swap_b32 v%d, v%d" % (80 + 4 * pr + 1, 80 + 4 * pr + 3))
        p("buffer_store_dwordx4 %s, v%d, s[84:87], s42 offen offset:%d" % (vr(80 + 4 * pr, 4), T0, pr * 32))
    if opts.get("stamp"):
        p("s_waitcnt vmcnt(0)")
    stamp(p, opts)
    stamp_flush(p, opts, T1)
    p("s_branch K1_END")
    p.auto_wait = False
    for tag, sc in rare_blocks:
        p.label("RARE_%s" % tag)
        p("v_mov_b32 v%d, v%d" % (X2, X1))
        p("v_permlane32_swap_b32 v%d, v%d" % (X1, X2))
        p("v_max3_f32 v%d, v%d, v%d, 0" % (X1, X1, X2))
        p("v_sub_f32 v%d, 0, v%d" % (X2, X1))
        p("v_exp_f32 v%d, v%d" % (X2, X2))
        for k in range(16):
            p("v_sub_f32 v%d, v%d, v%d" % (NEGM + k, NEGM + k, X1))
        for k in range(32):
            p("v_sub_f32 v%d, v%d, v%d" % (sc + k, sc + k, X1))
        p("v_mul_f32 v%d, v%d, v%d" % (L, L, X2))
        for k in range(64):
            p("v_mul_f32 v%d, v%d, v%d" % (O + k, O + k, X2))
        p("s_nop 1")
        p("s_branch BACK_%s" % tag)
    for u, need in spins:
        p.label("SPIN_%d" % u)
        p("s_sleep 1")
        p("ds_read_b128 %s, v%d offset:%d" % (vr(T0, 4), FA, F_LP))
        p("s_waitcnt lgkmcnt(0)")
        p("v_min_u32 v%d, v%d, v%d" % (T0, T0, T1))
        p("v_min3_u32 v%d, v%d, v%d, v%d" % (T0, T0, T2, T3))
        p("v_readfirstlane_b32 s53, v%d" % T0)
        p("s_sub_u32 s58, s58, 1")
        p("s_cmp_lt_i32 s58, 1")
        p("s_cbranch_scc1 SPUN_%d" % u)
        p("s_cmp_ge_u32 s53, %s" % need)
        p("s_cbranch_scc0 SPIN_%d" % u)
        p("s_branch SPUN_%d" % u)
    p.auto_wait = True


def build(opts):
    p = Prog()
    gen_kernel(p, opts)
    n = p.pad_hazards()
    sys.stderr.write("hazard nop states inserted: %d\n" % n)
    s = HEADER
    s += "; @launch grid=(256,1,1) block=(512,1,1) lds=%d\n" % LDS_BYTES
    s += '.amdgcn_target "amdgcn-amd-amdhsa--gfx950"\n.text\n'
    s += p.text()
    s += '.section .rodata,"a"\n'
    s += kd(NAME + "_kernel", 256, 96)
    return s


if __name__ == "__main__":
    out = sys.argv[1]
    opts = {}
    for a in sys.argv[2:]:
        k, v = a.split("=")
        opts[k] = float(v) if "." in v else int(v)
    open(out, "w").write(build(opts))
```

```python
import sys, math, struct
from asmlib import Prog, Inst, check_order
from gen import f32bits, vr, interleave, HEADER, kd, NAME
from gen5 import stamp_init, stamp, stamp_flush, uid

SLOT = 16384
LDS_BYTES = 160 * 1024
KBASE = 0
VBASE = 4 * SLOT
MISC = 9 * SLOT
F_LP, F_CP, F_C1, F_C2, F_G1, F_G2, F_NONCE = 0, 16, 32, 36, 40, 44, 48
FLAG_OFF = 48 << 20
PART_OFF = 16 << 20
SPIN_MAX = 1 << 18


def gen_kernel(p, opts):
    K = NAME + "_kernel"
    p.raw(".globl %s\n.p2align 8\n.type %s,@function" % (K, K))
    p.label(K)
    p("s_cmp_ge_u32 s2, 256")
    p("s_cbranch_scc1 K1_END")
    p("s_load_dwordx4 s[4:7], s[0:1], 0")
    p("s_load_dwordx4 s[8:11], s[0:1], 16")
    p("s_load_dwordx4 s[68:71], s[0:1], 32")
    p("s_load_dwordx2 s[72:73], s[0:1], 48")
    p("s_load_dwordx2 s[12:13], s[0:1], 56")
    p("v_lshrrev_b32 v1, 6, v0")
    p("v_and_b32 v0, 63, v0")
    p("v_readfirstlane_b32 s14, v1")
    p("s_and_b32 s40, s2, 7")
    p("s_lshr_b32 s41, s2, 3")
    p("s_lshr_b32 s15, s40, 2")
    p("s_lshl_b32 s15, s15, 2")
    p("s_lshr_b32 s42, s41, 3")
    p("s_add_u32 s15, s15, s42")
    p("s_and_b32 s18, s40, 3")
    p("s_and_b32 s19, s41, 7")
    p("s_lshl_b32 s16, s18, 3")
    p("s_add_u32 s16, s16, s19")
    p("s_lshl_b32 s17, s15, 5")
    p("s_add_u32 s17, s17, s16")
    p("v_lshlrev_b32 v2, 2, v0")
    p("v_add_u32 v2, %d, v2" % MISC)
    p("v_mov_b32 v3, 0")
    p("ds_write_b32 v2, v3")
    p("s_waitcnt lgkmcnt(0)")
    p.reset_tracking()
    p("s_mov_b32 s36, s12")
    p("s_mov_b32 s37, s13")
    p("s_mov_b32 s38, 0x4000000")
    p("s_mov_b32 s39, 0x20000")
    p("s_mov_b32 s76, s72")
    p("s_mov_b32 s77, s73")
    p("s_mov_b32 s78, 256")
    p("s_mov_b32 s79, 0x20000")
    p("s_mov_b32 s58, %d" % SPIN_MAX)
    p("s_barrier")
    stamp_init(p, opts)
    stamp(p, opts)
    if opts.get("stamp"):
        p("s_getreg_b32 s60, hwreg(HW_REG_XCC_ID)")
        p("v_writelane_b32 v254, s60, 60")
    p("s_cmp_ge_u32 s14, 4")
    p("s_cbranch_scc1 K1_LOADER")
    gen_compute(p, opts)
    p.label("K1_LOADER")
    p.reset_tracking()
    gen_loader(p, opts)
    p.label("K1_END")
    p("s_endpgm")


def gen_loader(p, opts):
    p.auto_wait = False
    p("s_sub_u32 s40, s14, 4")
    p("s_lshl_b32 s41, s40, 12")
    p("s_mov_b32 s45, 0")
    p("s_mov_b32 s48, 0")
    p("s_lshl_b32 s42, s15, 18")
    p("s_add_u32 s20, s4, s42")
    p("s_addc_u32 s21, s5, 0")
    p("s_mov_b32 s22, 0x40000")
    p("s_mov_b32 s23, 0x20000")
    p("s_lshl_b32 s42, s16, 8")
    p("s_add_u32 s24, s10, s42")
    p("s_addc_u32 s25, s11, 0")
    p("s_sub_u32 s26, 0x800000, s42")
    p("s_mov_b32 s27, 0x20000")
    p("v_lshrrev_b32 v1, 4, v0")
    p("v_and_b32 v2, 15, v0")
    p("v_lshrrev_b32 v3, 3, v0")
    p("v_and_b32 v4, 7, v0")
    p("v_lshlrev_b32 v5, 2, v1")
    p("v_xor_b32 v5, v5, v2")
    p("v_lshlrev_b32 v6, 4, v5")
    p("s_lshl_b32 s42, s40, 5")
    for ii in range(4):
        p("v_add_u32 v5, %d, v1" % (4 * (ii & 1)))
        p("v_xor_b32 v5, v5, v4")
        p("v_lshlrev_b32 v5, 4, v5")
        p("v_add_u32 v7, s42, v3")
        p("v_add_u32 v7, %d, v7" % (8 * ii))
        p("v_lshl_add_u32 v5, v7, 11, v5")
        if ii:
            p("v_subrev_u32 v%d, %d, v5" % (20 + ii, ii * 1024))
        else:
            p("v_mov_b32 v20, v5")
    p("s_lshl_b32 s42, s40, 4")
    for ii in range(4):
        p("v_add_u32 v5, s42, v1")
        p("v_add_u32 v5, %d, v5" % (4 * ii))
        p("v_lshl_add_u32 v7, v5, 13, v6")
        p("v_lshl_add_u32 v5, v5, 11, v6")
        p("v_subrev_u32 v%d, %d, v7" % (16 + ii, ii * 1024))
        p("v_subrev_u32 v%d, %d, v5" % (24 + ii, ii * 1024))
    p("s_lshl_b32 s52, s19, 1")
    p("s_and_b32 s53, s15, 3")
    p("s_lshl_b32 s53, s53, 2")
    p("s_add_u32 s52, s52, s53")
    rot = opts.get("rot", 1)
    if opts.get("ab", 1):
        if opts.get("abbit", 2) == 0:
            p("s_lshr_b32 s52, s19, 1")
        else:
            p("s_and_b32 s52, s19, 3")
        p("s_and_b32 s53, s15, 3")
        p("s_add_u32 s52, s52, s53")
        p("s_lshl_b32 s52, s52, 2")
    if rot == 0:
        p("s_mov_b32 s52, 0")
    elif rot == 2:
        p("s_and_b32 s52, s19, 3")
        p("s_and_b32 s53, s15, 3")
        p("s_add_u32 s52, s52, s53")
    elif rot == 3:
        p("s_lshr_b32 s52, s19, 1")
        p("s_and_b32 s53, s15, 1")
        p("s_lshl_b32 s53, s53, 2")
        p("s_add_u32 s52, s52, s53")
    p("v_mov_b32 v9, %d" % MISC)
    p("s_lshl_b32 s42, s40, 2")
    p("v_add_u32 v8, s42, v9")

    def dma(v0r, single, srd, pol):
        for ii in range(4):
            p("buffer_load_dwordx4 v%d, %s, s43 offen offset:%d%s lds" % (v0r if single else v0r + ii, srd, ii * 1024, pol))

    def q_issue(nreg):
        p("s_and_b32 s47, %s, 3" % nreg)
        p("s_lshl_b32 s47, s47, 14")
        p("s_add_u32 s47, s47, s41")
        p("s_add_u32 s44, s52, %s" % nreg)
        p("s_and_b32 s44, s44, 15")
        p("s_mov_b32 m0, s47")
        p("s_lshl_b32 s43, s44, 7")
        dma(20, False, "s[20:23]", "")
        p("s_add_u32 m0, s47, %d" % VBASE)
        p("s_lshl_b32 s43, s44, 19")
        dma(16, False, "s[24:27]", "")

    AB = opts.get("ab", 1)
    NR = opts.get("nr", 14)
    stream = [("K", 0)]
    for i in range(16):
        if i < 15:
            stream.append(("K", i + 1))
        stream.append(("V", i))

    def reg_load(t):
        kind, j = stream[t]
        r0 = 32 + 16 * (t % NR)
        p("s_mov_b32 s43, %d" % (j * 16384))
        for ii in range(4):
            v, srd = (10 + ii, "s[28:31]") if kind == "K" else (14, "s[32:35]")
            p("buffer_load_dwordx4 %s, v%d, %s, s43 offen offset:%d nt" % (vr(r0 + 4 * ii, 4), v, srd, ii * 1024))

    def reg_store(t):
        kind, j = stream[t]
        r0 = 32 + 16 * (t % NR)
        a = 15 if kind == "K" else 3
        for ii in range(4):
            p("ds_write_b128 v%d, %s offset:%d" % (a, vr(r0 + 4 * ii, 4), (j % 4) * SLOT + ii * 1024))

    p("s_lshl_b32 s42, s17, 18")
    p("s_add_u32 s28, s6, s42")
    p("s_addc_u32 s29, s7, 0")
    p("s_mov_b32 s30, 0x40000")
    p("s_mov_b32 s31, 0x20000")
    p("s_add_u32 s32, s8, s42")
    p("s_addc_u32 s33, s9, 0")
    p("s_mov_b32 s34, 0x40000")
    p("s_mov_b32 s35, 0x20000")
    for ii in range(4):
        p("v_add_u32 v5, %d, v1" % (4 * ii))
        p("v_xor_b32 v5, v5, v2")
        p("v_lshlrev_b32 v5, 4, v5")
        p("v_lshl_add_u32 v5, v1, 8, v5")
        p("v_add_u32 v%d, s41, v5" % (10 + ii))
    p("v_lshl_add_u32 v5, v1, 8, v6")
    p("v_add_u32 v14, s41, v5")
    p("v_lshlrev_b32 v5, 4, v0")
    p("v_add_u32 v15, s41, v5")
    p("s_lshl_b32 s42, s18, 21")
    p("s_lshl_b32 s43, s19, 8")
    p("s_add_u32 s42, s42, s43")
    p("s_add_u32 s80, s68, s42")
    p("s_addc_u32 s81, s69, 0")
    p("s_sub_u32 s82, 0x800000, s42")
    p("s_mov_b32 s83, 0x20000")
    p("s_lshl_b32 s54, s19, 1")
    p("s_lshl_b32 s55, s18, 3")
    p("s_lshl_b32 s42, s15, 5")
    p("s_add_u32 s55, s55, s42")
    p("s_lshl_b32 s55, s55, 15")
    p("v_add_u32 v3, %d, v15" % VBASE)
    if AB:
        p("s_bitcmp1_b32 s19, %d" % opts.get("abbit", 2))
        p("s_cbranch_scc0 A_START")
        if opts.get("bwpf", 1):
            for n in range(4):
                p("s_add_u32 s44, s52, %d" % n)
                p("s_and_b32 s44, s44, 15")
                p("s_lshl_b32 s43, s44, 19")
                for ii in range(4):
                    p("buffer_load_dwordx4 %s, v%d, s[24:27], s43 offen offset:%d" % (vr(32 + 16 * n + 4 * ii, 4), 16 + ii, ii * 1024))
            p("s_waitcnt vmcnt(4)")
        for t in range(NR):
            reg_load(t)
        p("s_waitcnt vmcnt(%d)" % opts.get("bwait", 8))
        p.label("A_START")
    for n in range(4):
        p("s_mov_b32 s50, %d" % n)
        q_issue("s50")
    p("s_waitcnt vmcnt(24)")
    p("s_barrier")
    p("s_mov_b32 s50, 4")
    p.label("LA")
    p("s_waitcnt vmcnt(16)")
    p("s_barrier")
    q_issue("s50")
    p("s_add_u32 s50, s50, 1")
    p("s_cmp_lt_u32 s50, 16")
    p("s_cbranch_scc1 LA")
    stamp(p, opts)

    def k_issue(j):
        if isinstance(j, int):
            p("s_add_u32 m0, s41, %d" % (KBASE + (j % 4) * SLOT))
            p("s_mov_b32 s43, %d" % (j * 16384))
        dma(10, False, "s[28:31]", " nt")

    def v_issue(j):
        if isinstance(j, int):
            p("s_add_u32 m0, s41, %d" % (VBASE + (j % 4) * SLOT))
            p("s_mov_b32 s43, %d" % (j * 16384))
        dma(14, True, "s[32:35]", " nt")

    if AB:
        p("s_bitcmp1_b32 s19, %d" % opts.get("abbit", 2))
        p("s_cbranch_scc1 B_KV")
    p("s_waitcnt vmcnt(16)")
    p("s_barrier")
    k_issue(0)
    p("s_waitcnt vmcnt(12)")
    p("s_barrier")
    k_issue(1); v_issue(0)
    p("s_waitcnt vmcnt(12)")
    p("s_barrier")
    k_issue(2); v_issue(1)
    p("s_cmp_lg_u32 s2, 0")
    p("s_cbranch_scc1 NONONCE")
    p("s_cmp_lg_u32 s14, 7")
    p("s_cbranch_scc1 NONONCE")
    p("s_memrealtime s[46:47]")
    p("s_waitcnt lgkmcnt(0)")
    p("s_or_b32 s46, s46, 1")
    p("v_mov_b32 v4, s46")
    p("v_mov_b32 v5, s47")
    p("v_mov_b32 v7, 0")
    p("s_mov_b64 exec, 1")
    p("buffer_store_dwordx2 v[4:5], v7, s[76:79], 0 offen sc1")
    p("s_mov_b64 exec, -1")
    p("s_waitcnt vmcnt(0)")
    p.label("NONONCE")
    p("s_mov_b32 s50, 3")
    p.label("LB")
    p("s_waitcnt vmcnt(16)")
    p("s_barrier")
    p("s_and_b32 s47, s50, 3")
    p("s_lshl_b32 s47, s47, 14")
    p("s_add_u32 m0, s47, s41")
    p("s_lshl_b32 s43, s50, 14")
    k_issue("s")
    p("s_sub_u32 s46, s50, 1")
    p("s_and_b32 s47, s46, 3")
    p("s_lshl_b32 s47, s47, 14")
    p("s_add_u32 s47, s47, s41")
    p("s_add_u32 m0, s47, %d" % VBASE)
    p("s_lshl_b32 s43, s46, 14")
    v_issue("s")
    p("s_add_u32 s50, s50, 1")
    p("s_cmp_lt_u32 s50, 16")
    p("s_cbranch_scc1 LB")
    stamp(p, opts)

    def z_issue(t):
        p("s_add_u32 m0, s41, %d" % (VBASE + (t % 4) * SLOT))
        p("s_add_u32 s43, s54, %d" % t)
        p("s_and_b32 s43, s43, 15")
        p("s_lshl_b32 s43, s43, 17")
        dma(24, False, "s[80:83]", "")

    def o_issue(t):
        p("s_add_u32 m0, s41, %d" % (KBASE + (t % 4) * SLOT))
        p("s_add_u32 s43, s54, %d" % t)
        p("s_and_b32 s43, s43, 15")
        p("s_lshl_b32 s43, s43, 14")
        p("s_add_u32 s43, s43, s55")
        dma(15, True, "s[36:39]", " sc1")

    def zpf(n, rb=None):
        p("s_add_u32 s43, s56, %d" % n)
        p("s_and_b32 s43, s43, 15")
        p("s_lshl_b32 s43, s43, 17")
        for ii in range(4):
            p("buffer_load_dwordx4 %s, v%d, s[80:83], s43 offen offset:%d" % (vr((32 + 16 * n if rb is None else rb) + 4 * ii, 4), 24 + ii, ii * 1024))

    p("s_and_b32 s56, s15, 3")
    p("s_mul_i32 s56, s56, 3")
    p("s_add_u32 s56, s56, s54")
    p("s_add_u32 s56, s56, 4")
    p("v_mov_b32 v7, 0")
    p("s_waitcnt vmcnt(16)")
    p("s_barrier")
    v_issue(15)
    p("buffer_load_dwordx2 v[28:29], v7, s[76:79], 0 offen sc1")
    zpf(0)
    p("s_waitcnt vmcnt(17)")
    p("s_barrier")
    z_issue(0); zpf(1)
    p("s_waitcnt vmcnt(17)")
    p("s_barrier")
    z_issue(1); zpf(2)
    p("s_waitcnt vmcnt(21)")
    p("s_barrier")
    z_issue(2)
    p.label("JOIN")
    p("s_lshl_b32 s42, s15, 2")
    p("s_add_u32 s42, s42, s18")
    p("s_lshl_b32 s42, s42, 7")
    p("s_add_u32 s42, s42, 0x%x" % FLAG_OFF)
    p("v_and_b32 v5, 7, v0")
    p("s_xor_b32 s46, s19, 1")
    p("v_mov_b32 v4, s46")
    p("v_cmp_eq_u32 vcc, s19, v5")
    p("v_cndmask_b32 v5, v5, v4, vcc")
    p("v_lshlrev_b32 v5, 3, v5")
    p("buffer_load_dwordx2 v[30:31], v5, s[36:39], s42 offen sc1")
    p("s_waitcnt vmcnt(0)")
    p.label("NONCE_CHK")
    p("v_cmp_eq_u32 vcc, 0, v28")
    p("s_cbranch_vccz NONCE_OK")
    p("s_sleep 8")
    p("buffer_load_dwordx2 v[28:29], v7, s[76:79], 0 offen sc1")
    p("s_waitcnt vmcnt(0)")
    p("s_sub_u32 s58, s58, 1")
    p("s_cmp_gt_i32 s58, 0")
    p("s_cbranch_scc1 NONCE_CHK")
    p.label("NONCE_OK")
    p("s_mov_b64 exec, 1")
    p("ds_write_b64 v9, v[28:29] offset:%d" % F_NONCE)
    p("s_mov_b64 exec, -1")
    p("s_mov_b32 s91, 0")
    p("v_cmp_ne_u64 vcc, v[30:31], v[28:29]")
    p("s_cbranch_vccnz NOT_EARLY")
    o_issue(2); o_issue(3)
    p("s_mov_b32 s91, 1")
    p.label("NOT_EARLY")
    p("s_waitcnt lgkmcnt(0)")
    stamp(p, opts)
    p("s_barrier")
    z_issue(3)
    p("s_barrier")
    p("s_cmp_lg_u32 s91, 0")
    p("s_cbranch_scc1 POLL1_SKIP")
    p.label("POLL1")
    p("buffer_load_dwordx2 v[30:31], v5, s[36:39], s42 offen sc1")
    p("s_waitcnt vmcnt(0)")
    p("v_cmp_ne_u64 vcc, v[30:31], v[28:29]")
    p("s_cbranch_vccz POLL1_OK")
    p("s_sleep %d" % opts.get("psleep", 2))
    p("s_sub_u32 s58, s58, 1")
    p("s_cmp_gt_i32 s58, 0")
    p("s_cbranch_scc1 POLL1")
    p.label("POLL1_OK")
    o_issue(2); o_issue(3)
    p.label("POLL1_SKIP")
    stamp(p, opts)
    o_issue(4); z_issue(4)
    p("s_waitcnt vmcnt(12)")
    p("s_barrier")
    o_issue(5); z_issue(5)
    p("s_waitcnt vmcnt(16)")
    p("s_barrier")
    o_issue(6); z_issue(6)
    p("s_mov_b32 s50, 7")
    p.label("LC")
    p("s_waitcnt vmcnt(16)")
    p("s_barrier")
    p("s_and_b32 s47, s50, 3")
    p("s_lshl_b32 s47, s47, 14")
    p("s_add_u32 s47, s47, s41")
    p("s_add_u32 s44, s54, s50")
    p("s_and_b32 s44, s44, 15")
    p("s_mov_b32 m0, s47")
    p("s_lshl_b32 s43, s44, 14")
    p("s_add_u32 s43, s43, s55")
    dma(15, True, "s[36:39]", " sc1")
    p("s_add_u32 m0, s47, %d" % VBASE)
    p("s_lshl_b32 s43, s44, 17")
    dma(24, False, "s[80:83]", "")
    p("s_add_u32 s50, s50, 1")
    p("s_cmp_lt_u32 s50, 16")
    p("s_cbranch_scc1 LC")
    p("s_waitcnt vmcnt(16)")
    p("s_barrier")
    p("s_waitcnt vmcnt(8)")
    p("s_barrier")
    p("s_waitcnt vmcnt(0)")
    p("s_barrier")
    stamp(p, opts)
    p("s_cmp_lg_u32 s14, 4")
    p("s_cbranch_scc1 LDONE")
    p("s_barrier")
    p("s_lshl_b32 s42, s15, 3")
    p("s_add_u32 s42, s42, s19")
    p("s_lshl_b32 s42, s42, 7")
    p("s_add_u32 s42, s42, 0x%x" % (FLAG_OFF + 8192))
    p("s_lshl_b32 s43, s18, 3")
    p("s_add_u32 s43, s43, s42")
    p("v_and_b32 v5, 3, v0")
    p("v_lshlrev_b32 v5, 3, v5")
    p("s_barrier")
    p("s_mov_b64 exec, 1")
    p("buffer_store_dwordx2 v[28:29], v7, s[36:39], s43 offen sc1")
    p("s_mov_b64 exec, -1")
    p.label("POLL2")
    p("buffer_load_dwordx2 v[30:31], v5, s[36:39], s42 offen sc1")
    p("s_waitcnt vmcnt(0)")
    p("v_cmp_ne_u64 vcc, v[30:31], v[28:29]")
    p("s_cbranch_vccz POLL2_OK")
    p("s_sleep %d" % opts.get("psleep", 1))
    p("s_sub_u32 s58, s58, 1")
    p("s_cmp_gt_i32 s58, 0")
    p("s_cbranch_scc1 POLL2")
    p.label("POLL2_OK")
    p("s_barrier")
    p.label("LDONE")
    stamp(p, opts)
    stamp_flush(p, opts, 5)
    if AB:
        p("s_branch K1_END")
        p.label("B_KV")
        p("s_and_b32 s56, s15, 3")
        p("s_mul_i32 s56, s56, 3")
        p("s_add_u32 s56, s56, s54")
        p("s_add_u32 s56, s56, 4")
        p("v_mov_b32 v7, 0")
        p("s_waitcnt vmcnt(16)")
        p("s_barrier")
        p("s_waitcnt vmcnt(8)")
        p("s_barrier")
        p("s_waitcnt vmcnt(0)")
        p("s_barrier")
        p.reset_tracking()
        p.auto_wait = True
        nxt = NR
        for n in range(16, 33):
            ts = [0] if n == 16 else ([2 * (n - 17) + 1, 2 * (n - 17) + 2] if n < 32 else [31])
            for t in ts:
                reg_store(t)
            p("s_waitcnt lgkmcnt(0)")
            p("s_barrier")
            stored = max(ts)
            last_n = opts.get("blast", 29)
            target = NR + int(math.ceil((32 - NR) * (n - 15) / float(last_n - 15)))
            while nxt < 32 and nxt < target and nxt - NR <= stored:
                reg_load(nxt)
                nxt += 1
            if n == 28:
                stamp(p, opts)
            if n == 29:
                p("buffer_load_dwordx2 v[28:29], v7, s[76:79], 0 offen sc1")
                zpf(0, 232)
            if n == 30:
                z_issue(0); zpf(1, 232)
            if n == 31:
                z_issue(1); zpf(2, 232)
            if n == 32:
                z_issue(2)
        assert nxt == 32
        p.auto_wait = False
        p("s_branch JOIN")
    p.auto_wait = True


def gen_compute(p, opts):
    O = 0
    Q = 64
    S = [96, 128]
    NEGM = 160
    KF = 176
    NKF = 6
    VF = 200
    KA = 232
    VA = 240
    T0, T1, T2, T3 = 244, 245, 246, 247
    L, CNT, FA, CPA, X1, X2 = 248, 249, 250, 251, 252, 253
    XB = [64, 80]
    WB = [96, 160]
    XA, WA = 224, 228
    TA, TB, TC, TD = 232, 233, 234, 235
    THR = opts.get("thr", 8.0)

    def lane_to(r):
        p("v_mbcnt_lo_u32_b32 v%d, -1, 0" % r)
        p("v_mbcnt_hi_u32_b32 v%d, -1, v%d" % (r, r))

    def lane_parts():
        lane = "v%d" % X1
        p("v_and_b32 v%d, 31, %s" % (TA, lane))
        p("v_lshrrev_b32 v%d, 5, %s" % (TB, lane))
        p("v_bfe_u32 v%d, %s, 2, 2" % (TC, lane))
        p("v_bfe_u32 v%d, %s, 4, 1" % (T1, lane))
        p("v_and_b32 v%d, 3, %s" % (T2, lane))
        p("v_lshlrev_b32 v%d, 3, v%d" % (T2, T2))
        p("v_lshl_add_u32 v%d, v%d, 5, v%d" % (TD, T1, T2))

    def wa_setup():
        p("v_lshl_add_u32 v%d, v%d, 3, v%d" % (T2, TB, TC))
        p("v_lshl_add_u32 v%d, v%d, 8, v%d" % (T2, T2, TD))
        for j in range(4):
            p("v_xor_b32 v%d, %d, v%d" % (T0, j, TC))
            p("v_lshl_add_u32 v%d, v%d, 6, v%d" % (T0, T0, T2))
            p("v_add_u32 v%d, %d, v%d" % (WA + j, VBASE, T0))

    p("v_mov_b32 v%d, v0" % X1)
    p("v_mov_b32 v%d, %d" % (FA, MISC))
    p("s_lshl_b32 s40, s14, 2")
    p("v_add_u32 v%d, s40, v%d" % (CPA, FA))
    p("v_mov_b32 v%d, 0" % CNT)
    lane_parts()
    p("s_lshl_b32 s40, s14, 5")
    p("v_add_u32 v%d, s40, v%d" % (T0, TA))
    p("v_bfe_u32 v%d, v%d, 1, 3" % (T1, T0))
    for t in range(4):
        p("v_add_u32 v%d, %d, v%d" % (T2, 2 * t, TB))
        p("v_xor_b32 v%d, v%d, v%d" % (T2, T2, T1))
        p("v_lshlrev_b32 v%d, 4, v%d" % (T2, T2))
        p("v_lshl_add_u32 v%d, v%d, 7, v%d" % (XA + t, T0, T2))
    wa_setup()

    spins = []

    def flag_read():
        return Inst("ds_read_b128 %s, v%d offset:%d" % (vr(T0, 4), FA, F_LP))

    def flag_check(need):
        u = uid()
        p("v_min_u32 v%d, v%d, v%d" % (T0, T0, T1))
        p("v_min3_u32 v%d, v%d, v%d, v%d" % (T0, T0, T2, T3))
        p("v_readfirstlane_b32 s53, v%d" % T0)
        p("s_cmp_ge_u32 s53, %s" % need)
        p("s_cbranch_scc0 SPIN_%d" % u)
        p.label("SPUN_%d" % u)
        spins.append((u, need))

    def done_step(inc="1"):
        p.need([("rd",)])
        p("v_add_u32 v%d, %s, v%d" % (CNT, inc, CNT))
        p("s_mov_b64 exec, 1")
        p("ds_write_b32 v%d, v%d offset:%d" % (CPA, CNT, F_CP))
        p("s_mov_b64 exec, -1")

    def tag_last(rds):
        rds[-1].tokens_out.append(("rd",))

    def gemm_mfmas(s):
        xb, wb = XB[s % 2], WB[s % 2]
        m = []
        for t in range(4):
            for j in range(4):
                m.append(Inst("v_mfma_f32_32x32x16_bf16 %s, %s, %s, %s" % (vr(O + 16 * j, 16), vr(wb + (t * 4 + j) * 4, 4), vr(xb + 4 * t, 4), vr(O + 16 * j, 16))))
        return m

    def g_reads(s):
        off = (s % 4) * SLOT
        xb, wb = XB[s % 2], WB[s % 2]
        r = []
        for t in range(4):
            r.append(Inst("ds_read_b128 %s, v%d offset:%d" % (vr(xb + 4 * t, 4), XA + t, off)))
            for j in range(4):
                for u in range(2):
                    r.append(Inst("ds_read_b64_tr_b16 %s, v%d offset:%d" % (vr(wb + (t * 4 + j) * 4 + 2 * u, 2), WA + j, off + (16 * t + 4 * u) * 256)))
        return r

    p("s_mov_b32 s88, 0")
    p("s_mov_b32 s90, 0")
    p.label("GEMM")
    p.lgkm = []
    for k in range(64):
        p("v_mov_b32 v%d, 0" % (O + k))
    p("s_barrier")
    stamp(p, opts)
    for i in g_reads(0):
        p.add(i)
    p("s_waitcnt lgkmcnt(0)")
    p("s_mov_b32 s51, 4")
    p.label("GLOOP")
    stamp(p, opts)
    RG = opts.get("rgaps", 12)
    for s in range(1, 5):
        rd = g_reads(s)
        mm = gemm_mfmas(s - 1)
        n = len(rd)
        ri = 0
        pre = opts.get("gpre", 1)
        for k, m in enumerate(mm):
            if k == pre:
                p("s_barrier")
            p.add(m)
            if k >= pre:
                kk = k - pre
                hi = min(n, (n * (kk + 1) + RG - 1) // RG)
                for i in rd[ri:hi]:
                    p.add(i)
                ri = max(ri, hi)
        assert ri == n
        p("s_waitcnt lgkmcnt(0)")
        if s == 1:
            p("s_cmp_lg_u32 s90, 0")
            p("s_cbranch_scc1 SIG1")
            p.label("SIG1_BACK")
    p("s_sub_u32 s51, s51, 1")
    p("s_cmp_lg_u32 s51, 0")
    p("s_cbranch_scc1 GLOOP")
    p("s_cmp_lg_u32 s88, 0")
    p("s_cbranch_scc1 TAIL_CONT")
    stamp(p, opts)
    lane = "v%d" % X1
    p("v_and_b32 v%d, 15, %s" % (T1, lane))
    for t in range(8):
        p("v_add_u32 v%d, %d, v%d" % (T2, 2 * t, TB))
        p("v_xor_b32 v%d, v%d, v%d" % (T2, T2, T1))
        p("v_lshlrev_b32 v%d, 4, v%d" % (T2, T2))
        p("v_lshl_add_u32 v%d, v%d, 8, v%d" % (XA + t, TA, T2))
    p("v_lshl_add_u32 v%d, v%d, 2, v%d" % (T2, TB, TC))
    p("v_lshl_add_u32 v%d, v%d, 8, v%d" % (T2, T2, TD))
    for j in range(4):
        p("v_xor_b32 v%d, %d, v%d" % (T0, j, TC))
        p("v_lshl_add_u32 v%d, v%d, 6, v%d" % (T0, T0, T2))
        p("v_add_u32 v%d, %d, v%d" % (VA + j, VBASE, T0))
    for t in range(8):
        p("v_mov_b32 v%d, v%d" % (KA + t, XA + t))
    cval = (128 ** -0.5) * math.log2(math.e)
    p("s_mov_b32 s44, 0x%08x" % f32bits(cval))

    def k_reads(j):
        r = []
        for n in range(16):
            kb, t = n // 8, n % 8
            r.append(Inst("ds_read_b128 %s, v%d offset:%d" % (vr(KF + 4 * (n % NKF), 4), KA + t, (j % 4) * SLOT + kb * 8192)))
        return r

    kr0 = k_reads(0)
    tag_last(kr0)
    for i in kr0[:NKF]:
        p.add(i)
    for t in range(8):
        base = O + 16 * (t // 2) + 8 * (t % 2)
        for k in range(8):
            p("v_mul_f32 v%d, s44, v%d" % (base + k, base + k))
        for k in range(4):
            p("v_cvt_pk_bf16_f32 v%d, v%d, v%d" % (Q + 4 * t + k, base + 2 * k, base + 2 * k + 1))
    for t in range(8):
        p("v_permlane32_swap_b32 v%d, v%d" % (Q + 4 * t + 0, Q + 4 * t + 2))
        p("v_permlane32_swap_b32 v%d, v%d" % (Q + 4 * t + 1, Q + 4 * t + 3))

    def regs(a, n):
        return [("v", a + k) for k in range(n)]

    def qk_mfmas(sb, first=False):
        m = []
        for n in range(16):
            kb, t = n // 8, n % 8
            c = ("0" if first else vr(NEGM, 16)) if t == 0 else vr(sb + 16 * kb, 16)
            extra = regs(KF + 4 * ((n + 1) % NKF), 4) if n % 2 == 0 else []
            m.append(Inst("v_mfma_f32_32x32x16_bf16 %s, %s, %s, %s" % (vr(sb + 16 * kb, 16), vr(KF + 4 * (n % NKF), 4), vr(Q + 4 * t, 4), c), tokens_in=extra))
        return m

    def v_reads(i):
        r = []
        for n in range(16):
            ks, j = n // 4, n % 4
            for u in range(2):
                r.append(Inst("ds_read_b64_tr_b16 %s, v%d offset:%d" % (vr(VF + 4 * (n % 8) + 2 * u, 2), VA + j, (i % 4) * SLOT + (16 * ks + 8 * u) * 256)))
        return r

    def pv_mfmas(sb):
        m = []
        for n in range(16):
            ks, j = n // 4, n % 4
            extra = regs(VF + 4 * ((n + 1) % 8), 4) if n % 2 == 0 else []
            m.append(Inst("v_mfma_f32_32x32x16_bf16 %s, %s, %s, %s" % (vr(O + 16 * j, 16), vr(VF + 4 * (n % 8), 4), vr(sb + 8 * ks, 4), vr(O + 16 * j, 16)), tokens_in=extra))
        return m

    def exp_group(sb, g):
        b = sb + 8 * g
        ex = [Inst("v_exp_f32 v%d, v%d" % (b + k, b + k)) for k in range(8)]
        ad = [Inst("v_add_f32 v%d, v%d, v%d" % (L, L, b + k)) for k in range(8)]
        cv = [Inst("v_cvt_pk_bf16_f32 v%d, v%d, v%d" % (b + k, b + 2 * k, b + 2 * k + 1)) for k in range(4)]
        r = ex + ad + cv
        o = []
        for k in range(8):
            o.append(ex[k])
            if k >= 1:
                o.append(ad[k - 1])
            if k >= 3 and k % 2 == 1:
                o.append(cv[(k - 3) // 2])
        o.append(ad[7])
        o.append(cv[3])
        check_order(r, o)
        return o

    def max_tree(sb):
        r = []
        r.append(Inst("v_max3_f32 v%d, v%d, v%d, v%d" % (X1, sb, sb + 1, sb + 2)))
        r.append(Inst("v_max3_f32 v%d, v%d, v%d, v%d" % (X2, sb + 16, sb + 17, sb + 18)))
        for k in range(3, 15, 2):
            r.append(Inst("v_max3_f32 v%d, v%d, v%d, v%d" % (X1, X1, sb + k, sb + k + 1)))
            r.append(Inst("v_max3_f32 v%d, v%d, v%d, v%d" % (X2, X2, sb + 16 + k, sb + 16 + k + 1)))
        r.append(Inst("v_max3_f32 v%d, v%d, v%d, v%d" % (X1, X1, sb + 15, sb + 31)))
        r.append(Inst("v_max_f32 v%d, v%d, v%d" % (X1, X1, X2)))
        return r

    mm = qk_mfmas(S[0], first=True)
    zero = [Inst("v_mov_b32 v%d, 0" % (O + k)) for k in range(64)] + [Inst("v_mov_b32 v%d, 0" % L)]
    seq = []
    zi = 0
    for n in range(16):
        seq.append(mm[n])
        if n + NKF < 16:
            seq.append(kr0[n + NKF])
        seq += zero[zi:zi + 4]; zi += 4
    seq += zero[zi:]
    for i in seq:
        p.add(i)
    for i in max_tree(S[0]):
        p.add(i)
    p("v_mov_b32 v%d, v%d" % (X2, X1))
    p("v_permlane32_swap_b32 v%d, v%d" % (X1, X2))
    p("v_max_f32 v%d, v%d, v%d" % (X1, X1, X2))
    for k in range(16):
        p("v_sub_f32 v%d, 0, v%d" % (NEGM + k, X1))
    for k in range(32):
        p("v_sub_f32 v%d, v%d, v%d" % (S[0] + k, S[0] + k, X1))

    rare_blocks = []

    def iteration(i, tag, qk=True, head=True):
        par = i % 2
        sc, sn = S[par], S[1 - par]
        stamp(p, opts, 2)
        dpv = pv_mfmas(sn)[12:] if head else []
        mt = max_tree(sc) if head else []
        if head:
            p.add(dpv[0])
            for x in mt[:4]:
                p.add(x)
        p("s_waitcnt lgkmcnt(0)")
        p("s_barrier")
        stamp(p, opts, 2)
        kr = k_reads(i + 1) if qk else []
        if head:
            pre = kr[:NKF]
            seq = list(pre[:3])
            fill = pre[3:] + mt[4:]
            per = (len(fill) + 1) // 2
            for k, m in enumerate(dpv[1:]):
                seq.append(m)
                if k < 2:
                    seq += fill[k * per:(k + 1) * per]
            last = seq.pop()
            cmpi = Inst("v_cmp_lt_f32 vcc, 0x%08x, v%d" % (f32bits(THR), X1))
            seq += [cmpi, last]
            check_order(pre + dpv[1:] + mt[4:] + [cmpi], seq)
            for x in seq:
                p.add(x)
            p("s_cbranch_vccnz RARE_%s" % tag)
            p.label("BACK_%s" % tag)
            rare_blocks.append((tag, sc))
        else:
            for x in kr[:NKF]:
                p.add(x)
        vrd = v_reads(i)
        tag_last(vrd)
        pv = pv_mfmas(sc)
        e0, e1, e2, e3 = [exp_group(sc, g) for g in range(4)]
        out = []
        if qk:
            mm = qk_mfmas(sn)
            ref = []
            for n in range(16):
                if n % 2 == 0:
                    for q in (n, n + 1):
                        if q >= NKF:
                            ref.append(kr[q])
                ref.append(mm[n])
            h2 = opts.get("e2split", 8)
            seq_ref = e0 + e1 + e2[:h2] + ref
            fill = e0 + e1 + e2[:h2] + vrd[:16]
            ph1 = interleave(mm, fill, lead=opts.get("lead1", 16))
            res = []
            cnt = 0
            for x in ph1:
                res.append(x)
                if x.kind == "mfma":
                    if cnt + NKF < 16:
                        res.append(kr[cnt + NKF])
                    cnt += 1
            out += res
            rest_e2 = e2[h2:]
        else:
            seq_ref = e0 + e1
            out += vrd[:16] + e0 + e1
            rest_e2 = e2
        fr = []
        npv = 12 if qk else 16
        ref2 = list(rest_e2 + e3)
        for n in range(16):
            if n % 2 == 0:
                ref2 += vrd[2 * n:2 * n + 4]
            if n < npv:
                ref2.append(pv[n])
        seq_ref = seq_ref + ref2 + fr
        a = interleave(pv[:8], rest_e2 + e3[:len(e3) // 2], lead=0)
        bpart = interleave(pv[8:12], e3[len(e3) // 2:] + fr, lead=0)
        res = []
        cnt = 0
        for x in a + bpart:
            res.append(x)
            if x.kind == "mfma":
                if cnt + 8 < 16:
                    res.append(vrd[2 * (cnt + 8)]); res.append(vrd[2 * (cnt + 8) + 1])
                cnt += 1
        out += res
        cpart = pv[12:] if not qk else []
        check_order(seq_ref, out + cpart)
        for x in out + cpart:
            p.add(x)

    iteration(0, "A0", head=False)
    iteration(1, "A1")
    iteration(2, "A2")
    p("s_mov_b32 s51, 3")
    p.label("K1_LOOP")
    entry_state = [set(x) for x in p.lgkm]
    stamp(p, opts)
    for i in range(3, 7):
        iteration(i, "L%d" % i)
    assert opts.get("stamp") or entry_state == p.lgkm, (entry_state, p.lgkm)
    p("s_sub_u32 s51, s51, 1")
    p("s_cmp_lg_u32 s51, 0")
    p("s_cbranch_scc1 K1_LOOP")
    iteration(15, "Z", qk=False)
    stamp(p, opts)
    AL = X2
    p("v_mov_b32 v%d, v%d" % (X1, L))
    p("v_permlane32_swap_b32 v%d, v%d" % (L, X1))
    p("v_add_f32 v%d, v%d, v%d" % (L, L, X1))
    p("v_rcp_f32 v%d, v%d" % (AL, L))
    LN = L
    lane_to(X1)
    p("v_lshlrev_b32 v%d, 4, v%d" % (LN, X1))
    p("s_lshl_b32 s40, s17, 15")
    p("s_lshl_b32 s41, s14, 12")
    p("s_add_u32 s40, s40, s41")
    p("s_add_u32 s42, s40, 16384")
    for u in range(8):
        base = O + 8 * u
        for k in range(8):
            p("v_mul_f32 v%d, v%d, v%d" % (base + k, base + k, AL))
        dst = Q + 4 * u
        for k in range(4):
            p("v_cvt_pk_bf16_f32 v%d, v%d, v%d" % (dst + k, base + 2 * k, base + 2 * k + 1))
        p("v_permlane32_swap_b32 v%d, v%d" % (dst, dst + 2))
        p("v_permlane32_swap_b32 v%d, v%d" % (dst + 1, dst + 3))
        p("buffer_store_dwordx4 %s, v%d, s[36:39], %s offen offset:%d sc1" % (vr(dst, 4), LN, "s40" if u < 4 else "s42", (u % 4) * 1024))
    p("v_add_u32 v%d, s41, v%d" % (XA, LN))
    for t in range(1, 4):
        p("v_add_u32 v%d, %d, v%d" % (XA + t, t * 1024, XA))
    for u in range(8):
        p("ds_write_b128 v%d, %s offset:%d" % (XA, vr(Q + 4 * u, 4), (u // 4) * SLOT + (u % 4) * 1024))
    lane_parts()
    wa_setup()
    p("s_lshl_b32 s56, s15, 2")
    p("s_add_u32 s56, s56, s18")
    p("s_lshl_b32 s56, s56, 7")
    p("s_lshl_b32 s42, s19, 3")
    p("s_add_u32 s56, s56, s42")
    p("s_add_u32 s56, s56, 0x%x" % FLAG_OFF)
    p("s_waitcnt lgkmcnt(0)")
    stamp(p, opts)
    p("s_mov_b32 s90, 1")
    p("s_mov_b32 s88, 1")
    p("s_branch GEMM")
    p.label("TAIL_CONT")
    p.lgkm = []
    p.vm = []
    stamp(p, opts)
    p("s_lshl_b32 s40, s15, 5")
    p("s_add_u32 s40, s40, s19")
    p("s_lshl_b32 s40, s40, 16")
    p("s_add_u32 s40, s40, 0x%x" % PART_OFF)
    p("s_lshl_b32 s41, s14, 12")
    p("s_add_u32 s40, s40, s41")
    p("s_lshl_b32 s41, s18, 14")
    p("s_add_u32 s41, s41, s40")
    for j in range(4):
        p("s_cmp_eq_u32 s18, %d" % j)
        p("s_cbranch_scc1 SKIPST_%d" % j)
        p("s_add_u32 s42, s41, %d" % (j * 8 * 65536))
        for q in range(4):
            p("buffer_store_dwordx4 %s, v%d, s[36:39], s42 offen offset:%d sc1" % (vr(O + 16 * j + 4 * q, 4), LN, q * 1024))
        p.label("SKIPST_%d" % j)
    for j in range(4):
        p("s_cmp_lg_u32 s18, %d" % j)
        p("s_cbranch_scc1 SKIPMV_%d" % j)
        for k in range(16):
            p("v_mov_b32 v%d, v%d" % (64 + k, O + 16 * j + k))
        p.label("SKIPMV_%d" % j)
    p("s_waitcnt vmcnt(0)")
    p("s_barrier")
    stamp(p, opts)
    lane_to(X1)
    p("s_mov_b32 s84, s70")
    p("s_mov_b32 s85, s71")
    p("s_mov_b32 s86, 0x200000")
    p("s_mov_b32 s87, 0x20000")
    p("v_and_b32 v%d, 31, v%d" % (T0, X1))
    p("v_lshrrev_b32 v%d, 5, v%d" % (T2, X1))
    p("v_lshlrev_b32 v%d, 11, v%d" % (T0, T0))
    p("v_lshl_add_u32 v%d, v%d, 4, v%d" % (T0, T2, T0))
    p("s_lshl_b32 s41, s18, 19")
    p("s_add_u32 s41, s41, s40")
    p("s_barrier")
    stamp(p, opts)
    for r in range(1, 4):
        p("s_add_u32 s42, s18, %d" % r)
        p("s_and_b32 s42, s42, 3")
        p("s_lshl_b32 s42, s42, 14")
        p("s_add_u32 s42, s42, s41")
        for q in range(4):
            p("buffer_load_dwordx4 %s, v%d, s[36:39], s42 offen offset:%d sc1" % (vr(96 + 16 * (r - 1) + 4 * q, 4), LN, q * 1024))
    p("s_lshl_b32 s42, s15, 2")
    p("s_add_u32 s42, s42, s14")
    p("s_lshl_b32 s42, s42, 16")
    p("s_lshl_b32 s43, s19, 8")
    p("s_add_u32 s42, s42, s43")
    p("s_lshl_b32 s43, s18, 6")
    p("s_add_u32 s42, s42, s43")
    for r in range(3):
        for k in range(16):
            p("v_add_f32 v%d, v%d, v%d" % (64 + k, 64 + k, 96 + 16 * r + k))
    for k in range(8):
        p("v_cvt_pk_bf16_f32 v%d, v%d, v%d" % (80 + k, 64 + 2 * k, 64 + 2 * k + 1))
    for pr in range(2):
        p("v_permlane32_swap_b32 v%d, v%d" % (80 + 4 * pr, 80 + 4 * pr + 2))
        p("v_permlane32_swap_b32 v%d, v%d" % (80 + 4 * pr + 1, 80 + 4 * pr + 3))
        p("buffer_store_dwordx4 %s, v%d, s[84:87], s42 offen offset:%d" % (vr(80 + 4 * pr, 4), T0, pr * 32))
    if opts.get("stamp"):
        p("s_waitcnt vmcnt(0)")
    stamp(p, opts)
    stamp_flush(p, opts, T1)
    p("s_branch K1_END")
    p.auto_wait = False
    p.label("SIG1")
    p("s_mov_b32 s90, 0")
    p("s_waitcnt vmcnt(0)")
    p("v_mov_b32 v%d, 1" % X1)
    p("s_mov_b64 exec, 1")
    p("ds_add_rtn_u32 v%d, v%d, v%d offset:%d" % (X2, FA, X1, F_C1))
    p("ds_read_b64 %s, v%d offset:%d" % (vr(T0, 2), FA, F_NONCE))
    p("s_waitcnt lgkmcnt(0)")
    p("v_readfirstlane_b32 s53, v%d" % X2)
    p("s_cmp_lg_u32 s53, 3")
    p("s_cbranch_scc1 NOSIG1")
    p("v_mov_b32 v%d, 0" % X2)
    p("buffer_store_dwordx2 %s, v%d, s[36:39], s56 offen sc1" % (vr(T0, 2), X2))
    p.label("NOSIG1")
    p("s_mov_b64 exec, -1")
    p("s_branch SIG1_BACK")
    for tag, sc in rare_blocks:
        p.label("RARE_%s" % tag)
        p("v_mov_b32 v%d, v%d" % (X2, X1))
        p("v_permlane32_swap_b32 v%d, v%d" % (X1, X2))
        p("v_max3_f32 v%d, v%d, v%d, 0" % (X1, X1, X2))
        p("v_sub_f32 v%d, 0, v%d" % (X2, X1))
        p("v_exp_f32 v%d, v%d" % (X2, X2))
        for k in range(16):
            p("v_sub_f32 v%d, v%d, v%d" % (NEGM + k, NEGM + k, X1))
        for k in range(32):
            p("v_sub_f32 v%d, v%d, v%d" % (sc + k, sc + k, X1))
        p("v_mul_f32 v%d, v%d, v%d" % (L, L, X2))
        for k in range(64):
            p("v_mul_f32 v%d, v%d, v%d" % (O + k, O + k, X2))
        p("s_nop 1")
        p("s_branch BACK_%s" % tag)
    p.auto_wait = True


def build(opts):
    p = Prog()
    gen_kernel(p, opts)
    n = p.pad_hazards()
    sys.stderr.write("hazard nop states inserted: %d\n" % n)
    s = HEADER
    s += "; @launch grid=(256,1,1) block=(512,1,1) lds=%d\n" % LDS_BYTES
    s += '.amdgcn_target "amdgcn-amd-amdhsa--gfx950"\n.text\n'
    s += p.text()
    s += '.section .rodata,"a"\n'
    s += kd(NAME + "_kernel", 256, 96)
    return s


if __name__ == "__main__":
    out = sys.argv[1]
    opts = {}
    for a in sys.argv[2:]:
        k, v = a.split("=")
        opts[k] = float(v) if "." in v else int(v)
    open(out, "w").write(build(opts))
```

```python
import sys, math, struct
from asmlib import Prog, Inst, check_order
from gen import f32bits, vr, interleave, HEADER, kd, NAME
from gen5 import stamp_init, stamp, stamp_flush, uid

SLOT = 16384
LDS_BYTES = 160 * 1024
KBASE = 0
VBASE = 4 * SLOT
MISC = 9 * SLOT
F_LP, F_CP, F_C1, F_C2, F_G1, F_G2, F_NONCE = 0, 16, 32, 36, 40, 44, 48
F_MB = 64
FLAG_OFF = 48 << 20
PART_OFF = 16 << 20
SPIN_MAX = 1 << 18


def gen_kernel(p, opts):
    K = NAME + "_kernel"
    p.raw(".globl %s\n.p2align 8\n.type %s,@function" % (K, K))
    p.label(K)
    p("s_cmp_ge_u32 s2, 256")
    p("s_cbranch_scc1 K1_END")
    p("s_load_dwordx4 s[4:7], s[0:1], 0")
    p("s_load_dwordx4 s[8:11], s[0:1], 16")
    p("s_load_dwordx4 s[68:71], s[0:1], 32")
    p("s_load_dwordx2 s[72:73], s[0:1], 48")
    p("s_load_dwordx2 s[12:13], s[0:1], 56")
    p("v_lshrrev_b32 v1, 6, v0")
    p("v_and_b32 v0, 63, v0")
    p("v_readfirstlane_b32 s14, v1")
    p("s_and_b32 s40, s2, 7")
    p("s_lshr_b32 s41, s2, 3")
    p("s_lshr_b32 s15, s40, 2")
    p("s_lshl_b32 s15, s15, 2")
    p("s_lshr_b32 s42, s41, 3")
    p("s_add_u32 s15, s15, s42")
    p("s_and_b32 s18, s40, 3")
    p("s_and_b32 s19, s41, 7")
    p("s_lshl_b32 s16, s18, 3")
    p("s_add_u32 s16, s16, s19")
    p("s_lshl_b32 s17, s15, 5")
    p("s_add_u32 s17, s17, s16")
    p("v_lshlrev_b32 v2, 2, v0")
    p("v_add_u32 v2, %d, v2" % MISC)
    p("v_mov_b32 v3, 0")
    p("ds_write_b32 v2, v3")
    p("s_waitcnt lgkmcnt(0)")
    p.reset_tracking()
    p("s_mov_b32 s36, s12")
    p("s_mov_b32 s37, s13")
    p("s_mov_b32 s38, 0x4000000")
    p("s_mov_b32 s39, 0x20000")
    p("s_mov_b32 s76, s72")
    p("s_mov_b32 s77, s73")
    p("s_mov_b32 s78, 256")
    p("s_mov_b32 s79, 0x20000")
    p("s_mov_b32 s58, %d" % SPIN_MAX)
    p("s_barrier")
    stamp_init(p, opts)
    stamp(p, opts)
    if opts.get("stamp"):
        p("s_getreg_b32 s60, hwreg(HW_REG_XCC_ID)")
        p("v_writelane_b32 v254, s60, 60")
    p("s_cmp_ge_u32 s14, 4")
    p("s_cbranch_scc1 K1_LOADER")
    gen_compute(p, opts)
    p.label("K1_LOADER")
    p.reset_tracking()
    gen_loader(p, opts)
    p.label("K1_END")
    p("s_endpgm")


def gen_loader(p, opts):
    p.auto_wait = False
    p("s_sub_u32 s40, s14, 4")
    p("s_lshl_b32 s41, s40, 12")
    p("s_mov_b32 s45, 0")
    p("s_mov_b32 s48, 0")
    p("s_lshl_b32 s42, s15, 18")
    p("s_add_u32 s20, s4, s42")
    p("s_addc_u32 s21, s5, 0")
    p("s_mov_b32 s22, 0x40000")
    p("s_mov_b32 s23, 0x20000")
    p("s_lshl_b32 s42, s16, 8")
    p("s_add_u32 s24, s10, s42")
    p("s_addc_u32 s25, s11, 0")
    p("s_sub_u32 s26, 0x800000, s42")
    p("s_mov_b32 s27, 0x20000")
    p("v_lshrrev_b32 v1, 4, v0")
    p("v_and_b32 v2, 15, v0")
    p("v_lshrrev_b32 v3, 3, v0")
    p("v_and_b32 v4, 7, v0")
    p("v_lshlrev_b32 v5, 2, v1")
    p("v_xor_b32 v5, v5, v2")
    p("v_lshlrev_b32 v6, 4, v5")
    p("s_lshl_b32 s42, s40, 5")
    for ii in range(4):
        p("v_add_u32 v5, %d, v1" % (4 * (ii & 1)))
        p("v_xor_b32 v5, v5, v4")
        p("v_lshlrev_b32 v5, 4, v5")
        p("v_add_u32 v7, s42, v3")
        p("v_add_u32 v7, %d, v7" % (8 * ii))
        p("v_lshl_add_u32 v5, v7, 11, v5")
        if ii:
            p("v_subrev_u32 v%d, %d, v5" % (20 + ii, ii * 1024))
        else:
            p("v_mov_b32 v20, v5")
    p("s_lshl_b32 s42, s40, 4")
    for ii in range(4):
        p("v_add_u32 v5, s42, v1")
        p("v_add_u32 v5, %d, v5" % (4 * ii))
        p("v_lshl_add_u32 v7, v5, 13, v6")
        p("v_lshl_add_u32 v5, v5, 11, v6")
        p("v_subrev_u32 v%d, %d, v7" % (16 + ii, ii * 1024))
        p("v_subrev_u32 v%d, %d, v5" % (24 + ii, ii * 1024))
    p("s_lshl_b32 s52, s19, 1")
    p("s_and_b32 s53, s15, 3")
    p("s_lshl_b32 s53, s53, 2")
    p("s_add_u32 s52, s52, s53")
    rot = opts.get("rot", 1)
    if opts.get("ab", 0):
        if opts.get("abbit", 2) == 0:
            p("s_lshr_b32 s52, s19, 1")
        else:
            p("s_and_b32 s52, s19, 3")
        p("s_and_b32 s53, s15, 3")
        p("s_add_u32 s52, s52, s53")
        p("s_lshl_b32 s52, s52, 2")
    if rot == 0:
        p("s_mov_b32 s52, 0")
    elif rot == 2:
        p("s_and_b32 s52, s19, 3")
        p("s_and_b32 s53, s15, 3")
        p("s_add_u32 s52, s52, s53")
    elif rot == 3:
        p("s_lshr_b32 s52, s19, 1")
        p("s_and_b32 s53, s15, 1")
        p("s_lshl_b32 s53, s53, 2")
        p("s_add_u32 s52, s52, s53")
    p("v_mov_b32 v9, %d" % MISC)
    p("s_lshl_b32 s42, s40, 2")
    p("v_add_u32 v8, s42, v9")

    def dma(v0r, single, srd, pol):
        for ii in range(4):
            p("buffer_load_dwordx4 v%d, %s, s43 offen offset:%d%s lds" % (v0r if single else v0r + ii, srd, ii * 1024, pol))

    def q_issue(nreg, px="", pw=""):
        p("s_and_b32 s47, %s, 3" % nreg)
        p("s_lshl_b32 s47, s47, 14")
        p("s_add_u32 s47, s47, s41")
        p("s_add_u32 s44, s52, %s" % nreg)
        p("s_and_b32 s44, s44, 15")
        p("s_mov_b32 m0, s47")
        p("s_lshl_b32 s43, s44, 7")
        dma(20, False, "s[20:23]", px)
        p("s_add_u32 m0, s47, %d" % VBASE)
        p("s_lshl_b32 s43, s44, 19")
        dma(16, False, "s[24:27]", pw)

    AB = opts.get("ab", 0)
    NR = opts.get("nr", 14)
    stream = [("K", 0)]
    for i in range(16):
        if i < 15:
            stream.append(("K", i + 1))
        stream.append(("V", i))

    def reg_load(t):
        kind, j = stream[t]
        r0 = 32 + 16 * (t % NR)
        p("s_mov_b32 s43, %d" % (j * 16384))
        for ii in range(4):
            v, srd = (10 + ii, "s[28:31]") if kind == "K" else (14, "s[32:35]")
            p("buffer_load_dwordx4 %s, v%d, %s, s43 offen offset:%d nt" % (vr(r0 + 4 * ii, 4), v, srd, ii * 1024))

    def reg_store(t):
        kind, j = stream[t]
        r0 = 32 + 16 * (t % NR)
        a = 15 if kind == "K" else 3
        for ii in range(4):
            p("ds_write_b128 v%d, %s offset:%d" % (a, vr(r0 + 4 * ii, 4), (j % 4) * SLOT + ii * 1024))

    p("s_lshl_b32 s42, s17, 18")
    p("s_add_u32 s28, s6, s42")
    p("s_addc_u32 s29, s7, 0")
    p("s_mov_b32 s30, 0x40000")
    p("s_mov_b32 s31, 0x20000")
    p("s_add_u32 s32, s8, s42")
    p("s_addc_u32 s33, s9, 0")
    p("s_mov_b32 s34, 0x40000")
    p("s_mov_b32 s35, 0x20000")
    for ii in range(4):
        p("v_add_u32 v5, %d, v1" % (4 * ii))
        p("v_xor_b32 v5, v5, v2")
        p("v_lshlrev_b32 v5, 4, v5")
        p("v_lshl_add_u32 v5, v1, 8, v5")
        p("v_add_u32 v%d, s41, v5" % (10 + ii))
    p("v_lshl_add_u32 v5, v1, 8, v6")
    p("v_add_u32 v14, s41, v5")
    p("v_lshlrev_b32 v5, 4, v0")
    p("v_add_u32 v15, s41, v5")
    p("s_lshl_b32 s42, s18, 21")
    p("s_lshl_b32 s43, s19, 8")
    p("s_add_u32 s42, s42, s43")
    p("s_add_u32 s80, s68, s42")
    p("s_addc_u32 s81, s69, 0")
    p("s_sub_u32 s82, 0x800000, s42")
    p("s_mov_b32 s83, 0x20000")
    p("s_lshl_b32 s54, s19, 1")
    p("s_lshl_b32 s55, s18, 3")
    p("s_lshl_b32 s42, s15, 5")
    p("s_add_u32 s55, s55, s42")
    p("s_lshl_b32 s55, s55, 15")
    p("v_add_u32 v3, %d, v15" % VBASE)
    if AB:
        p("s_bitcmp1_b32 s19, %d" % opts.get("abbit", 2))
        p("s_cbranch_scc0 A_START")
        if opts.get("bwpf", 1):
            for n in range(4):
                p("s_add_u32 s44, s52, %d" % n)
                p("s_and_b32 s44, s44, 15")
                p("s_lshl_b32 s43, s44, 19")
                for ii in range(4):
                    p("buffer_load_dwordx4 %s, v%d, s[24:27], s43 offen offset:%d" % (vr(32 + 16 * n + 4 * ii, 4), 16 + ii, ii * 1024))
            p("s_waitcnt vmcnt(4)")
        for t in range(NR):
            reg_load(t)
        p("s_waitcnt vmcnt(%d)" % opts.get("bwait", 8))
        p.label("A_START")
    START = opts.get("start", 2)

    def qi(n):
        p("s_mov_b32 s50, %d" % n)
        m = opts.get("qnt", 0)
        q_issue("s50", " nt" if (m & 1 and n < 2) else "", " nt" if (m & 2 and n < 4) else "")

    def pf(kind, sreg, r0):
        p("s_lshl_b32 s43, %s, %d" % (sreg, 7 if kind == "X" else 19))
        for ii in range(4):
            v, srd = (20 + ii, "s[20:23]") if kind == "X" else (16 + ii, "s[24:27]")
            p("buffer_load_dwordx4 %s, v%d, %s, s43 offen offset:%d" % (vr(r0 + 4 * ii, 4), v, srd, ii * 1024))

    if START == 0:
        for n in range(4):
            qi(n)
        p("s_waitcnt vmcnt(24)")
        p("s_barrier")
        p("s_mov_b32 s50, 4")
    elif START == 2:
        qi(0); qi(1)
        p("s_waitcnt vmcnt(8)")
        p("s_barrier")
        qi(2)
        p("s_waitcnt vmcnt(8)")
        p("s_barrier")
        qi(3); qi(4)
        p("s_mov_b32 s50, 5")
    else:
        p("s_mov_b32 s52, 0")
        p("s_and_b32 s53, s15, 3")
        qi(0); qi(1)
        p("s_waitcnt vmcnt(8)")
        p("s_barrier")
        qi(2)
        p("s_waitcnt vmcnt(8)")
        p("s_barrier")
        qi(3)
        p("s_add_u32 s46, s53, 4")
        pf("W", "s46", 232)
        p("s_add_u32 s46, s19, 4")
        pf("X", "s46", 232)
        p("s_waitcnt vmcnt(16)")
        p("s_barrier")
        p("s_add_u32 s46, s53, 8")
        pf("W", "s46", 232)
        p("s_waitcnt vmcnt(12)")
        p("s_barrier")
        p("s_and_b32 s46, s19, 3")
        p("s_add_u32 s46, s46, 12")
        pf("X", "s46", 232)
        p("s_add_u32 s46, s53, 12")
        pf("W", "s46", 232)
        qi(4); qi(5); qi(6)
        p("s_mov_b32 s50, 7")
    p.label("LA")
    p("s_waitcnt vmcnt(16)")
    p("s_barrier")
    q_issue("s50")
    p("s_add_u32 s50, s50, 1")
    p("s_cmp_lt_u32 s50, 16")
    p("s_cbranch_scc1 LA")
    stamp(p, opts)

    def k_issue(j):
        if isinstance(j, int):
            p("s_add_u32 m0, s41, %d" % (KBASE + (j % 4) * SLOT))
            p("s_mov_b32 s43, %d" % (j * 16384))
        dma(10, False, "s[28:31]", " nt")

    def v_issue(j):
        if isinstance(j, int):
            p("s_add_u32 m0, s41, %d" % (VBASE + (j % 4) * SLOT))
            p("s_mov_b32 s43, %d" % (j * 16384))
        dma(14, True, "s[32:35]", " nt")

    if AB:
        p("s_bitcmp1_b32 s19, %d" % opts.get("abbit", 2))
        p("s_cbranch_scc1 B_KV")
    def z_issue(t):
        p("s_add_u32 m0, s41, %d" % (VBASE + (t % 4) * SLOT))
        p("s_add_u32 s43, s54, %d" % t)
        p("s_and_b32 s43, s43, 15")
        p("s_lshl_b32 s43, s43, 17")
        dma(24, False, "s[80:83]", " nt" if (opts.get("znt") and t < 4) else "")

    def o_issue(t):
        p("s_add_u32 m0, s41, %d" % (KBASE + (t % 4) * SLOT))
        p("s_add_u32 s43, s54, %d" % t)
        p("s_and_b32 s43, s43, 15")
        p("s_lshl_b32 s43, s43, 14")
        p("s_add_u32 s43, s43, s55")
        dma(15, True, "s[36:39]", " sc1")

    def zpf(n, rb=None):
        p("s_add_u32 s43, s56, %d" % n)
        p("s_and_b32 s43, s43, 15")
        p("s_lshl_b32 s43, s43, 17")
        for ii in range(4):
            p("buffer_load_dwordx4 %s, v%d, s[80:83], s43 offen offset:%d%s" % (vr((32 + 16 * n if rb is None else rb) + 4 * ii, 4), 24 + ii, ii * 1024, " nt" if opts.get("znt") else ""))

    p("s_and_b32 s56, s15, 3")
    p("s_lshl_b32 s56, s56, 2")
    p("s_add_u32 s56, s56, s54")
    p("s_add_u32 s56, s56, 2")
    p("v_mov_b32 v7, 0")
    p("s_cmp_lg_u32 s2, 0")
    p("s_cbranch_scc1 NONONCE")
    p("s_cmp_lg_u32 s14, 7")
    p("s_cbranch_scc1 NONONCE")
    p("s_memrealtime s[46:47]")
    p("s_waitcnt lgkmcnt(0)")
    p("s_or_b32 s46, s46, 1")
    p("v_mov_b32 v4, s46")
    p("v_mov_b32 v5, s47")
    p("v_mov_b32 v7, 0")
    p("s_mov_b64 exec, 1")
    p("buffer_store_dwordx2 v[4:5], v7, s[76:79], 0 offen sc1")
    p("s_mov_b64 exec, -1")
    p("s_waitcnt vmcnt(0)")
    p.label("NONONCE")
    W = opts.get("kvw", 12)
    SPF = opts.get("spf", 0)
    BURST = opts.get("burst", 0)
    p("s_lshr_b32 s95, s2, 3")
    p("s_add_u32 s95, s95, s2")
    p("s_and_b32 s95, s95, 7")
    p("s_add_u32 s95, s95, %d" % opts.get("burst0", 18))
    p("s_and_b32 s57, s15, 3")
    p("s_lshl_b32 s57, s57, 2")
    p("s_add_u32 s57, s57, s54")
    groups = []
    for t, (kind, j) in enumerate(stream):
        if kind == "K":
            groups.append((("K", j), (lambda j=j: k_issue(j)), 13 + j, 4))
        else:
            if SPF:
                def vpf(j=j):
                    v_issue(j)
                    for q in range(j * SPF, min(16, (j + 1) * SPF)):
                        p("s_add_u32 s43, s57, %d" % (q // 4))
                        p("s_and_b32 s43, s43, 15")
                        p("s_lshl_b32 s43, s43, 17")
                        p("buffer_load_dwordx4 %s, v%d, s[80:83], s43 offen offset:%d" % (vr(32 + 4 * q, 4), 24 + q % 4, (q % 4) * 1024))
                npf = max(0, min(16, (j + 1) * SPF) - j * SPF)
                groups.append((("V", j), vpf, (13 + j) if j < 4 else (14 + j), 4 + npf))
            else:
                groups.append((("V", j), (lambda j=j: v_issue(j)), (13 + j) if j < 4 else (14 + j), 4))
    def nonce_load():
        p("buffer_load_dwordx2 v[28:29], v7, s[76:79], 0 offen sc1")
        if not SPF and not BURST:
            zpf(0)
    groups.append((("pf", 0), nonce_load, 0, 1 if (SPF or BURST) else 5))
    groups.append((("Z", 0), (lambda: z_issue(0)), 30, 4))
    if not SPF and not BURST:
        groups.append((("pf", 1), (lambda: zpf(1)), 0, 4))
    groups.append((("Z", 1), (lambda: z_issue(1)), 31, 4))
    if not SPF and not BURST:
        groups.append((("pf", 2), (lambda: zpf(2)), 0, 4))
        groups.append((("pf", 3), (lambda: zpf(3)), 0, 4))
    out = [("Q", 13)] * 8 + [("Q", 14)] * 8 + [("Q", 15)] * 8
    gi = [0]

    def wait_until(pred):
        last = -1
        for i, e in enumerate(out):
            if pred(e):
                last = i
        if last >= 0:
            n = len(out) - 1 - last
            p("s_waitcnt vmcnt(%d)" % n)
            del out[:last + 1]

    def issue_next(throttle=True):
        name, emit, fr, nl = groups[gi[0]]
        if throttle and len(out) > W - 4:
            p("s_waitcnt vmcnt(%d)" % (W - 4))
            del out[:len(out) - (W - 4)]
        emit()
        out.extend([name] * nl)
        gi[0] += 1

    for n in range(13, 33):
        need = [("Q", n)] if n < 16 else ([("K", 0)] if n == 16 else ([("K", n - 16), ("V", n - 17)] if n < 32 else [("V", 15)]))
        names = [x[0] for x in groups]
        lastneed = max([names.index(x) for x in need if x in names] + [-1])
        while gi[0] < len(groups) and gi[0] <= lastneed + W // 4 and groups[gi[0]][2] <= n - 1:
            issue_next(throttle=(n > 16))
        wait_until(lambda e: e in need)
        p("s_barrier")
        if BURST == 1 and opts.get("burst0", 18) <= n < opts.get("burst0", 18) + 8:
            p("s_cmp_lg_u32 s95, %d" % n)
            p("s_cbranch_scc1 NOBURST_%d" % n)
            for q in range(4):
                zpf(q)
            p.label("NOBURST_%d" % n)
        if n == 28:
            stamp(p, opts)
    while gi[0] < len(groups):
        issue_next(throttle=False)
    p.label("JOIN")
    p("s_lshl_b32 s42, s15, 2")
    p("s_add_u32 s42, s42, s18")
    p("s_lshl_b32 s42, s42, 7")
    p("s_add_u32 s42, s42, 0x%x" % FLAG_OFF)
    p("v_and_b32 v5, 7, v0")
    p("v_lshlrev_b32 v5, 3, v5")
    p("s_lshl_b32 s92, 1, s19")
    p("s_waitcnt vmcnt(0)")
    p.label("NONCE_CHK")
    p("v_cmp_eq_u32 vcc, 0, v28")
    p("s_cbranch_vccz NONCE_OK")
    p("s_sleep 8")
    p("buffer_load_dwordx2 v[28:29], v7, s[76:79], 0 offen sc1")
    p("s_waitcnt vmcnt(0)")
    p("s_sub_u32 s58, s58, 1")
    p("s_cmp_gt_i32 s58, 0")
    p("s_cbranch_scc1 NONCE_CHK")
    p.label("NONCE_OK")
    p("s_mov_b64 exec, 1")
    p("ds_write_b64 v9, v[28:29] offset:%d" % F_NONCE)
    p("s_mov_b64 exec, -1")

    p("s_mov_b32 s94, 0")

    def decide(seq, blocking, tag, keep):
        p("s_lshl_b32 s47, %s, 2" % seq)
        p("v_add_u32 v6, s47, v9")
        p("s_cmp_lg_u32 s14, 4")
        p("s_cbranch_scc1 DR_%s" % tag)
        p("s_andn2_b32 s46, s94, s92")
        p("s_cbranch_scc1 DH_%s" % tag)
        p.label("DP_%s" % tag)
        p("buffer_load_dwordx2 v[30:31], v5, s[36:39], s42 offen sc1")
        p("s_waitcnt vmcnt(0)")
        p("v_cmp_eq_u64 vcc, v[30:31], v[28:29]")
        p("s_and_b32 s94, vcc_lo, 0xff")
        p("s_andn2_b32 s46, s94, s92")
        p("s_cbranch_scc1 DH_%s" % tag)
        if blocking:
            p("s_sleep %d" % opts.get("psleep", 1))
            p("s_sub_u32 s58, s58, 1")
            p("s_cmp_gt_i32 s58, 0")
            p("s_cbranch_scc1 DP_%s" % tag)
            p("s_andn2_b32 s46, 0xff, s92")
        else:
            p("s_mov_b32 s93, 15")
            p("s_branch DW_%s" % tag)
        p.label("DH_%s" % tag)
        p("s_lshl_b32 s47, s46, 8")
        p("s_or_b32 s47, s47, s46")
        p("s_lshr_b32 s47, s47, s19")
        p("s_ff1_i32_b32 s47, s47")
        p("s_add_u32 s47, s47, s19")
        p("s_and_b32 s93, s47, 7")
        p.label("DW_%s" % tag)
        p("s_add_u32 s47, s93, 1")
        p("v_mov_b32 v4, s47")
        p("s_mov_b64 exec, 1")
        p("ds_write_b32 v6, v4 offset:%d" % F_MB)
        p("s_mov_b64 exec, -1")
        p("s_branch DD_%s" % tag)
        p.label("DR_%s" % tag)
        p("ds_read_b32 v4, v6 offset:%d" % F_MB)
        p("s_waitcnt lgkmcnt(0)")
        p("v_readfirstlane_b32 s47, v4")
        p("s_sub_u32 s93, s47, 1")
        p("s_and_b32 s93, s93, 15")
        p("s_sub_u32 s58, s58, 1")
        p("s_cmp_lt_i32 s58, 1")
        p("s_cbranch_scc1 DD_%s" % tag)
        p("s_cmp_eq_u32 s47, 0")
        p("s_cbranch_scc1 DR_%s" % tag)
        p.label("DD_%s" % tag)

    def mark():
        p("s_lshl_b32 s47, 1, s93")
        p("s_or_b32 s92, s92, s47")

    def tile_issue(slot, half):
        p("s_lshl_b32 s44, s93, 1")
        p("s_add_u32 s44, s44, %s" % half)
        if isinstance(slot, int):
            p("s_add_u32 s47, s41, %d" % (slot * SLOT))
        else:
            p("s_add_u32 s47, s41, %s" % slot)
        p("s_mov_b32 m0, s47")
        p("s_lshl_b32 s43, s44, 14")
        p("s_add_u32 s43, s43, s55")
        dma(15, True, "s[36:39]", " sc1")
        p("s_add_u32 m0, s47, %d" % VBASE)
        p("s_lshl_b32 s43, s44, 17")
        dma(24, False, "s[80:83]", "")

    decide(1, False, "E", 0)
    p("s_cmp_eq_u32 s93, 15")
    p("s_cbranch_scc1 NOT_EARLY")
    mark()
    tile_issue(2, 0)
    p.label("NOT_EARLY")
    p("s_waitcnt lgkmcnt(0)")
    stamp(p, opts)
    p("s_barrier")
    p("s_cmp_eq_u32 s93, 15")
    p("s_cbranch_scc1 NOT_EARLY2")
    tile_issue(3, 1)
    p.label("NOT_EARLY2")
    p("s_barrier")
    p("s_cmp_lg_u32 s93, 15")
    p("s_cbranch_scc1 LATE_SKIP")
    decide(2, True, "L", 0)
    mark()
    tile_issue(2, 0)
    tile_issue(3, 1)
    p.label("LATE_SKIP")
    stamp(p, opts)
    p("s_mov_b32 s50, 4")
    p("s_branch LC_IN")
    p.label("LC")
    p("s_waitcnt vmcnt(16)")
    p("s_barrier")
    p.label("LC_IN")
    p("s_bitcmp1_b32 s50, 0")
    p("s_cbranch_scc1 LC_ODD")
    decide("s50", True, "C", 0)
    mark()
    p.label("LC_ODD")
    p("s_and_b32 s48, s50, 3")
    p("s_lshl_b32 s48, s48, 14")
    p("s_and_b32 s49, s50, 1")
    tile_issue("s48", "s49")
    p("s_add_u32 s50, s50, 1")
    p("s_cmp_lt_u32 s50, 16")
    p("s_cbranch_scc1 LC")
    p("s_waitcnt vmcnt(16)")
    p("s_barrier")
    p("s_waitcnt vmcnt(8)")
    p("s_barrier")
    p("s_waitcnt vmcnt(0)")
    p("s_barrier")
    stamp(p, opts)
    p("s_cmp_lg_u32 s14, 4")
    p("s_cbranch_scc1 LDONE")
    p("s_barrier")
    p("s_lshl_b32 s42, s15, 3")
    p("s_add_u32 s42, s42, s19")
    p("s_lshl_b32 s42, s42, 7")
    p("s_add_u32 s42, s42, 0x%x" % (FLAG_OFF + 8192))
    p("s_lshl_b32 s43, s18, 3")
    p("s_add_u32 s43, s43, s42")
    p("v_and_b32 v5, 3, v0")
    p("v_lshlrev_b32 v5, 3, v5")
    p("s_barrier")
    p("s_mov_b64 exec, 1")
    p("buffer_store_dwordx2 v[28:29], v7, s[36:39], s43 offen sc1")
    p("s_mov_b64 exec, -1")
    p.label("POLL2")
    p("buffer_load_dwordx2 v[30:31], v5, s[36:39], s42 offen sc1")
    p("s_waitcnt vmcnt(0)")
    p("v_cmp_ne_u64 vcc, v[30:31], v[28:29]")
    p("s_cbranch_vccz POLL2_OK")
    p("s_sleep %d" % opts.get("psleep", 1))
    p("s_sub_u32 s58, s58, 1")
    p("s_cmp_gt_i32 s58, 0")
    p("s_cbranch_scc1 POLL2")
    p.label("POLL2_OK")
    p("s_barrier")
    p.label("LDONE")
    stamp(p, opts)
    stamp_flush(p, opts, 5)
    if AB:
        p("s_branch K1_END")
        p.label("B_KV")
        p("s_and_b32 s56, s15, 3")
        p("s_mul_i32 s56, s56, 3")
        p("s_add_u32 s56, s56, s54")
        p("s_add_u32 s56, s56, 4")
        p("v_mov_b32 v7, 0")
        p("s_waitcnt vmcnt(16)")
        p("s_barrier")
        p("s_waitcnt vmcnt(8)")
        p("s_barrier")
        p("s_waitcnt vmcnt(0)")
        p("s_barrier")
        p.reset_tracking()
        p.auto_wait = True
        nxt = NR
        for n in range(16, 33):
            ts = [0] if n == 16 else ([2 * (n - 17) + 1, 2 * (n - 17) + 2] if n < 32 else [31])
            for t in ts:
                reg_store(t)
            p("s_waitcnt lgkmcnt(0)")
            p("s_barrier")
            stored = max(ts)
            last_n = opts.get("blast", 29)
            target = NR + int(math.ceil((32 - NR) * (n - 15) / float(last_n - 15)))
            while nxt < 32 and nxt < target and nxt - NR <= stored:
                reg_load(nxt)
                nxt += 1
            if n == 28:
                stamp(p, opts)
            if n == 29:
                p("buffer_load_dwordx2 v[28:29], v7, s[76:79], 0 offen sc1")
                zpf(0, 232)
            if n == 30:
                z_issue(0); zpf(1, 232)
            if n == 31:
                z_issue(1); zpf(2, 232)
            if n == 32:
                z_issue(2)
        assert nxt == 32
        p.auto_wait = False
        p("s_branch JOIN")
    p.auto_wait = True


def gen_compute(p, opts):
    O = 0
    Q = 64
    S = [96, 128]
    NEGM = 160
    KF = 176
    NKF = 6
    VF = 200
    KA = 232
    VA = 240
    T0, T1, T2, T3 = 244, 245, 246, 247
    L, CNT, FA, CPA, X1, X2 = 248, 249, 250, 251, 252, 253
    XB = [64, 80]
    WB = [96, 160]
    XA, WA = 224, 228
    TA, TB, TC, TD = 232, 233, 234, 235
    THR = opts.get("thr", 8.0)

    def lane_to(r):
        p("v_mbcnt_lo_u32_b32 v%d, -1, 0" % r)
        p("v_mbcnt_hi_u32_b32 v%d, -1, v%d" % (r, r))

    def lane_parts():
        lane = "v%d" % X1
        p("v_and_b32 v%d, 31, %s" % (TA, lane))
        p("v_lshrrev_b32 v%d, 5, %s" % (TB, lane))
        p("v_bfe_u32 v%d, %s, 2, 2" % (TC, lane))
        p("v_bfe_u32 v%d, %s, 4, 1" % (T1, lane))
        p("v_and_b32 v%d, 3, %s" % (T2, lane))
        p("v_lshlrev_b32 v%d, 3, v%d" % (T2, T2))
        p("v_lshl_add_u32 v%d, v%d, 5, v%d" % (TD, T1, T2))

    def wa_setup():
        p("v_lshl_add_u32 v%d, v%d, 3, v%d" % (T2, TB, TC))
        p("v_lshl_add_u32 v%d, v%d, 8, v%d" % (T2, T2, TD))
        for j in range(4):
            p("v_xor_b32 v%d, %d, v%d" % (T0, j, TC))
            p("v_lshl_add_u32 v%d, v%d, 6, v%d" % (T0, T0, T2))
            p("v_add_u32 v%d, %d, v%d" % (WA + j, VBASE, T0))

    if opts.get("cpf", 1):
        p.raw("    s_getpc_b64 s[60:61]")
        p.label("PCL")
        p.raw("    s_sub_u32 s60, s60, PCL-%s_kernel" % NAME)
        p.raw("    s_subb_u32 s61, s61, 0")
        p("s_mov_b32 s64, s60")
        p("s_mov_b32 s65, s61")
        p.raw("    s_mov_b32 s66, K1_END-%s_kernel" % NAME)
        p("s_mov_b32 s67, 0x20000")
        p("s_lshr_b32 s62, s2, 3")
        p("s_and_b32 s62, s62, 7")
        p("s_lshl_b32 s62, s62, 2")
        p("s_add_u32 s62, s62, s14")
        p("s_lshl_b32 s62, s62, 10")
        p("v_lshlrev_b32 v%d, 4, v0" % T0)
        p("buffer_load_dwordx4 v[100:103], v%d, s[64:67], s62 offen" % T0)
        p.vm = []
    p("v_mov_b32 v%d, v0" % X1)
    p("v_mov_b32 v%d, %d" % (FA, MISC))
    p("s_lshl_b32 s40, s14, 2")
    p("v_add_u32 v%d, s40, v%d" % (CPA, FA))
    p("v_mov_b32 v%d, 0" % CNT)
    lane_parts()
    p("s_lshl_b32 s40, s14, 5")
    p("v_add_u32 v%d, s40, v%d" % (T0, TA))
    p("v_bfe_u32 v%d, v%d, 1, 3" % (T1, T0))
    for t in range(4):
        p("v_add_u32 v%d, %d, v%d" % (T2, 2 * t, TB))
        p("v_xor_b32 v%d, v%d, v%d" % (T2, T2, T1))
        p("v_lshlrev_b32 v%d, 4, v%d" % (T2, T2))
        p("v_lshl_add_u32 v%d, v%d, 7, v%d" % (XA + t, T0, T2))
    wa_setup()

    spins = []

    def flag_read():
        return Inst("ds_read_b128 %s, v%d offset:%d" % (vr(T0, 4), FA, F_LP))

    def flag_check(need):
        u = uid()
        p("v_min_u32 v%d, v%d, v%d" % (T0, T0, T1))
        p("v_min3_u32 v%d, v%d, v%d, v%d" % (T0, T0, T2, T3))
        p("v_readfirstlane_b32 s53, v%d" % T0)
        p("s_cmp_ge_u32 s53, %s" % need)
        p("s_cbranch_scc0 SPIN_%d" % u)
        p.label("SPUN_%d" % u)
        spins.append((u, need))

    def done_step(inc="1"):
        p.need([("rd",)])
        p("v_add_u32 v%d, %s, v%d" % (CNT, inc, CNT))
        p("s_mov_b64 exec, 1")
        p("ds_write_b32 v%d, v%d offset:%d" % (CPA, CNT, F_CP))
        p("s_mov_b64 exec, -1")

    def tag_last(rds):
        rds[-1].tokens_out.append(("rd",))

    def gemm_mfmas(s):
        xb, wb = XB[s % 2], WB[s % 2]
        m = []
        for t in range(4):
            for j in range(4):
                m.append(Inst("v_mfma_f32_32x32x16_bf16 %s, %s, %s, %s" % (vr(O + 16 * j, 16), vr(wb + (t * 4 + j) * 4, 4), vr(xb + 4 * t, 4), vr(O + 16 * j, 16))))
        return m

    def g_reads(s):
        off = (s % 4) * SLOT
        xb, wb = XB[s % 2], WB[s % 2]
        r = []
        for t in range(4):
            r.append(Inst("ds_read_b128 %s, v%d offset:%d" % (vr(xb + 4 * t, 4), XA + t, off)))
            for j in range(4):
                for u in range(2):
                    r.append(Inst("ds_read_b64_tr_b16 %s, v%d offset:%d" % (vr(wb + (t * 4 + j) * 4 + 2 * u, 2), WA + j, off + (16 * t + 4 * u) * 256)))
        return r

    p("s_mov_b32 s88, 0")
    p("s_mov_b32 s90, 0")
    if opts.get("cpf", 1):
        p("s_waitcnt vmcnt(0)")
    p.label("GEMM")
    p.lgkm = []
    for k in range(64):
        p("v_mov_b32 v%d, 0" % (O + k))
    p("s_barrier")
    stamp(p, opts)
    for i in g_reads(0):
        p.add(i)
    p("s_waitcnt lgkmcnt(0)")
    p("s_mov_b32 s51, 4")
    p.label("GLOOP")
    stamp(p, opts)
    RG = opts.get("rgaps", 12)
    for s in range(1, 5):
        rd = g_reads(s)
        mm = gemm_mfmas(s - 1)
        n = len(rd)
        ri = 0
        pre = opts.get("gpre", 1)
        for k, m in enumerate(mm):
            if k == pre:
                p("s_barrier")
            p.add(m)
            if k >= pre:
                kk = k - pre
                hi = min(n, (n * (kk + 1) + RG - 1) // RG)
                for i in rd[ri:hi]:
                    p.add(i)
                ri = max(ri, hi)
        assert ri == n
        p("s_waitcnt lgkmcnt(0)")
        if s == 1:
            p("s_cmp_lg_u32 s90, 0")
            p("s_cbranch_scc1 SIG1")
            p.label("SIG1_BACK")
    p("s_sub_u32 s51, s51, 1")
    p("s_cmp_lg_u32 s51, 0")
    p("s_cbranch_scc1 GLOOP")
    p("s_cmp_lg_u32 s88, 0")
    p("s_cbranch_scc1 TAIL_CONT")
    stamp(p, opts)
    lane = "v%d" % X1
    p("v_and_b32 v%d, 15, %s" % (T1, lane))
    for t in range(8):
        p("v_add_u32 v%d, %d, v%d" % (T2, 2 * t, TB))
        p("v_xor_b32 v%d, v%d, v%d" % (T2, T2, T1))
        p("v_lshlrev_b32 v%d, 4, v%d" % (T2, T2))
        p("v_lshl_add_u32 v%d, v%d, 8, v%d" % (XA + t, TA, T2))
    p("v_lshl_add_u32 v%d, v%d, 2, v%d" % (T2, TB, TC))
    p("v_lshl_add_u32 v%d, v%d, 8, v%d" % (T2, T2, TD))
    for j in range(4):
        p("v_xor_b32 v%d, %d, v%d" % (T0, j, TC))
        p("v_lshl_add_u32 v%d, v%d, 6, v%d" % (T0, T0, T2))
        p("v_add_u32 v%d, %d, v%d" % (VA + j, VBASE, T0))
    for t in range(8):
        p("v_mov_b32 v%d, v%d" % (KA + t, XA + t))
    cval = (128 ** -0.5) * math.log2(math.e)
    p("s_mov_b32 s44, 0x%08x" % f32bits(cval))

    def k_reads(j):
        r = []
        for n in range(16):
            kb, t = n // 8, n % 8
            r.append(Inst("ds_read_b128 %s, v%d offset:%d" % (vr(KF + 4 * (n % NKF), 4), KA + t, (j % 4) * SLOT + kb * 8192)))
        return r

    kr0 = k_reads(0)
    tag_last(kr0)
    for i in kr0[:NKF]:
        p.add(i)
    for t in range(8):
        base = O + 16 * (t // 2) + 8 * (t % 2)
        for k in range(8):
            p("v_mul_f32 v%d, s44, v%d" % (base + k, base + k))
        for k in range(4):
            p("v_cvt_pk_bf16_f32 v%d, v%d, v%d" % (Q + 4 * t + k, base + 2 * k, base + 2 * k + 1))
    for t in range(8):
        p("v_permlane32_swap_b32 v%d, v%d" % (Q + 4 * t + 0, Q + 4 * t + 2))
        p("v_permlane32_swap_b32 v%d, v%d" % (Q + 4 * t + 1, Q + 4 * t + 3))

    def regs(a, n):
        return [("v", a + k) for k in range(n)]

    def qk_mfmas(sb, first=False):
        m = []
        for n in range(16):
            kb, t = n // 8, n % 8
            c = ("0" if first else vr(NEGM, 16)) if t == 0 else vr(sb + 16 * kb, 16)
            extra = regs(KF + 4 * ((n + 1) % NKF), 4) if n % 2 == 0 else []
            m.append(Inst("v_mfma_f32_32x32x16_bf16 %s, %s, %s, %s" % (vr(sb + 16 * kb, 16), vr(KF + 4 * (n % NKF), 4), vr(Q + 4 * t, 4), c), tokens_in=extra))
        return m

    def v_reads(i):
        r = []
        for n in range(16):
            ks, j = n // 4, n % 4
            for u in range(2):
                r.append(Inst("ds_read_b64_tr_b16 %s, v%d offset:%d" % (vr(VF + 4 * (n % 8) + 2 * u, 2), VA + j, (i % 4) * SLOT + (16 * ks + 8 * u) * 256)))
        return r

    def pv_mfmas(sb):
        m = []
        for n in range(16):
            ks, j = n // 4, n % 4
            extra = regs(VF + 4 * ((n + 1) % 8), 4) if n % 2 == 0 else []
            m.append(Inst("v_mfma_f32_32x32x16_bf16 %s, %s, %s, %s" % (vr(O + 16 * j, 16), vr(VF + 4 * (n % 8), 4), vr(sb + 8 * ks, 4), vr(O + 16 * j, 16)), tokens_in=extra))
        return m

    def exp_group(sb, g):
        b = sb + 8 * g
        ex = [Inst("v_exp_f32 v%d, v%d" % (b + k, b + k)) for k in range(8)]
        ad = [Inst("v_add_f32 v%d, v%d, v%d" % (L, L, b + k)) for k in range(8)]
        cv = [Inst("v_cvt_pk_bf16_f32 v%d, v%d, v%d" % (b + k, b + 2 * k, b + 2 * k + 1)) for k in range(4)]
        r = ex + ad + cv
        o = []
        for k in range(8):
            o.append(ex[k])
            if k >= 1:
                o.append(ad[k - 1])
            if k >= 3 and k % 2 == 1:
                o.append(cv[(k - 3) // 2])
        o.append(ad[7])
        o.append(cv[3])
        check_order(r, o)
        return o

    def max_tree(sb):
        r = []
        r.append(Inst("v_max3_f32 v%d, v%d, v%d, v%d" % (X1, sb, sb + 1, sb + 2)))
        r.append(Inst("v_max3_f32 v%d, v%d, v%d, v%d" % (X2, sb + 16, sb + 17, sb + 18)))
        for k in range(3, 15, 2):
            r.append(Inst("v_max3_f32 v%d, v%d, v%d, v%d" % (X1, X1, sb + k, sb + k + 1)))
            r.append(Inst("v_max3_f32 v%d, v%d, v%d, v%d" % (X2, X2, sb + 16 + k, sb + 16 + k + 1)))
        r.append(Inst("v_max3_f32 v%d, v%d, v%d, v%d" % (X1, X1, sb + 15, sb + 31)))
        r.append(Inst("v_max_f32 v%d, v%d, v%d" % (X1, X1, X2)))
        return r

    mm = qk_mfmas(S[0], first=True)
    zero = [Inst("v_mov_b32 v%d, 0" % (O + k)) for k in range(64)] + [Inst("v_mov_b32 v%d, 0" % L)]
    seq = []
    zi = 0
    for n in range(16):
        seq.append(mm[n])
        if n + NKF < 16:
            seq.append(kr0[n + NKF])
        seq += zero[zi:zi + 4]; zi += 4
    seq += zero[zi:]
    for i in seq:
        p.add(i)
    for i in max_tree(S[0]):
        p.add(i)
    p("v_mov_b32 v%d, v%d" % (X2, X1))
    p("v_permlane32_swap_b32 v%d, v%d" % (X1, X2))
    p("v_max_f32 v%d, v%d, v%d" % (X1, X1, X2))
    for k in range(16):
        p("v_sub_f32 v%d, 0, v%d" % (NEGM + k, X1))
    for k in range(32):
        p("v_sub_f32 v%d, v%d, v%d" % (S[0] + k, S[0] + k, X1))

    rare_blocks = []

    def iteration(i, tag, qk=True, head=True):
        par = i % 2
        sc, sn = S[par], S[1 - par]
        stamp(p, opts, 2)
        dpv = pv_mfmas(sn)[12:] if head else []
        mt = max_tree(sc) if head else []
        if head:
            p.add(dpv[0])
            for x in mt[:4]:
                p.add(x)
        p("s_waitcnt lgkmcnt(0)")
        p("s_barrier")
        stamp(p, opts, 2)
        kr = k_reads(i + 1) if qk else []
        if head:
            pre = kr[:NKF]
            seq = list(pre[:3])
            fill = pre[3:] + mt[4:]
            per = (len(fill) + 1) // 2
            for k, m in enumerate(dpv[1:]):
                seq.append(m)
                if k < 2:
                    seq += fill[k * per:(k + 1) * per]
            last = seq.pop()
            cmpi = Inst("v_cmp_lt_f32 vcc, 0x%08x, v%d" % (f32bits(THR), X1))
            seq += [cmpi, last]
            check_order(pre + dpv[1:] + mt[4:] + [cmpi], seq)
            for x in seq:
                p.add(x)
            p("s_cbranch_vccnz RARE_%s" % tag)
            p.label("BACK_%s" % tag)
            rare_blocks.append((tag, sc))
        else:
            for x in kr[:NKF]:
                p.add(x)
        vrd = v_reads(i)
        tag_last(vrd)
        pv = pv_mfmas(sc)
        e0, e1, e2, e3 = [exp_group(sc, g) for g in range(4)]
        out = []
        if qk:
            mm = qk_mfmas(sn)
            ref = []
            for n in range(16):
                if n % 2 == 0:
                    for q in (n, n + 1):
                        if q >= NKF:
                            ref.append(kr[q])
                ref.append(mm[n])
            h2 = opts.get("e2split", 8)
            seq_ref = e0 + e1 + e2[:h2] + ref
            fill = e0 + e1 + e2[:h2] + vrd[:16]
            ph1 = interleave(mm, fill, lead=opts.get("lead1", 16))
            res = []
            cnt = 0
            for x in ph1:
                res.append(x)
                if x.kind == "mfma":
                    if cnt + NKF < 16:
                        res.append(kr[cnt + NKF])
                    cnt += 1
            out += res
            rest_e2 = e2[h2:]
        else:
            seq_ref = e0 + e1
            out += vrd[:16] + e0 + e1
            rest_e2 = e2
        fr = []
        npv = 12 if qk else 16
        ref2 = list(rest_e2 + e3)
        for n in range(16):
            if n % 2 == 0:
                ref2 += vrd[2 * n:2 * n + 4]
            if n < npv:
                ref2.append(pv[n])
        seq_ref = seq_ref + ref2 + fr
        a = interleave(pv[:8], rest_e2 + e3[:len(e3) // 2], lead=0)
        bpart = interleave(pv[8:12], e3[len(e3) // 2:] + fr, lead=0)
        res = []
        cnt = 0
        for x in a + bpart:
            res.append(x)
            if x.kind == "mfma":
                if cnt + 8 < 16:
                    res.append(vrd[2 * (cnt + 8)]); res.append(vrd[2 * (cnt + 8) + 1])
                cnt += 1
        out += res
        cpart = pv[12:] if not qk else []
        check_order(seq_ref, out + cpart)
        for x in out + cpart:
            p.add(x)

    iteration(0, "A0", head=False)
    iteration(1, "A1")
    iteration(2, "A2")
    p("s_mov_b32 s51, 3")
    p.label("K1_LOOP")
    entry_state = [set(x) for x in p.lgkm]
    stamp(p, opts)
    for i in range(3, 7):
        iteration(i, "L%d" % i)
    assert opts.get("stamp") or entry_state == p.lgkm, (entry_state, p.lgkm)
    p("s_sub_u32 s51, s51, 1")
    p("s_cmp_lg_u32 s51, 0")
    p("s_cbranch_scc1 K1_LOOP")
    iteration(15, "Z", qk=False)
    stamp(p, opts)
    AL = X2
    p("v_mov_b32 v%d, v%d" % (X1, L))
    p("v_permlane32_swap_b32 v%d, v%d" % (L, X1))
    p("v_add_f32 v%d, v%d, v%d" % (L, L, X1))
    p("v_rcp_f32 v%d, v%d" % (AL, L))
    LN = L
    lane_to(X1)
    p("v_lshlrev_b32 v%d, 4, v%d" % (LN, X1))
    p("s_lshl_b32 s40, s17, 15")
    p("s_lshl_b32 s41, s14, 12")
    p("s_add_u32 s40, s40, s41")
    p("s_add_u32 s42, s40, 16384")
    for u in range(8):
        base = O + 8 * u
        for k in range(8):
            p("v_mul_f32 v%d, v%d, v%d" % (base + k, base + k, AL))
        dst = Q + 4 * u
        for k in range(4):
            p("v_cvt_pk_bf16_f32 v%d, v%d, v%d" % (dst + k, base + 2 * k, base + 2 * k + 1))
        p("v_permlane32_swap_b32 v%d, v%d" % (dst, dst + 2))
        p("v_permlane32_swap_b32 v%d, v%d" % (dst + 1, dst + 3))
        p("buffer_store_dwordx4 %s, v%d, s[36:39], %s offen offset:%d sc1" % (vr(dst, 4), LN, "s40" if u < 4 else "s42", (u % 4) * 1024))
    p("v_add_u32 v%d, s41, v%d" % (XA, LN))
    for t in range(1, 4):
        p("v_add_u32 v%d, %d, v%d" % (XA + t, t * 1024, XA))
    for u in range(8):
        p("ds_write_b128 v%d, %s offset:%d" % (XA, vr(Q + 4 * u, 4), (u // 4) * SLOT + (u % 4) * 1024))
    lane_parts()
    wa_setup()
    p("s_lshl_b32 s56, s15, 2")
    p("s_add_u32 s56, s56, s18")
    p("s_lshl_b32 s56, s56, 7")
    p("s_lshl_b32 s42, s19, 3")
    p("s_add_u32 s56, s56, s42")
    p("s_add_u32 s56, s56, 0x%x" % FLAG_OFF)
    p("s_waitcnt lgkmcnt(0)")
    stamp(p, opts)
    p("s_mov_b32 s90, 1")
    p("s_mov_b32 s88, 1")
    p("s_branch GEMM")
    p.label("TAIL_CONT")
    p.lgkm = []
    p.vm = []
    stamp(p, opts)
    p("s_lshl_b32 s40, s15, 5")
    p("s_add_u32 s40, s40, s19")
    p("s_lshl_b32 s40, s40, 16")
    p("s_add_u32 s40, s40, 0x%x" % PART_OFF)
    p("s_lshl_b32 s41, s14, 12")
    p("s_add_u32 s40, s40, s41")
    p("s_lshl_b32 s41, s18, 14")
    p("s_add_u32 s41, s41, s40")
    for j in range(4):
        p("s_cmp_eq_u32 s18, %d" % j)
        p("s_cbranch_scc1 SKIPST_%d" % j)
        p("s_add_u32 s42, s41, %d" % (j * 8 * 65536))
        for q in range(4):
            p("buffer_store_dwordx4 %s, v%d, s[36:39], s42 offen offset:%d sc1" % (vr(O + 16 * j + 4 * q, 4), LN, q * 1024))
        p.label("SKIPST_%d" % j)
    for j in range(4):
        p("s_cmp_lg_u32 s18, %d" % j)
        p("s_cbranch_scc1 SKIPMV_%d" % j)
        for k in range(16):
            p("v_mov_b32 v%d, v%d" % (64 + k, O + 16 * j + k))
        p.label("SKIPMV_%d" % j)
    p("s_waitcnt vmcnt(0)")
    p("s_barrier")
    stamp(p, opts)
    lane_to(X1)
    p("s_mov_b32 s84, s70")
    p("s_mov_b32 s85, s71")
    p("s_mov_b32 s86, 0x200000")
    p("s_mov_b32 s87, 0x20000")
    p("v_and_b32 v%d, 31, v%d" % (T0, X1))
    p("v_lshrrev_b32 v%d, 5, v%d" % (T2, X1))
    p("v_lshlrev_b32 v%d, 11, v%d" % (T0, T0))
    p("v_lshl_add_u32 v%d, v%d, 4, v%d" % (T0, T2, T0))
    p("s_lshl_b32 s41, s18, 19")
    p("s_add_u32 s41, s41, s40")
    p("s_barrier")
    stamp(p, opts)
    for r in range(1, 4):
        p("s_add_u32 s42, s18, %d" % r)
        p("s_and_b32 s42, s42, 3")
        p("s_lshl_b32 s42, s42, 14")
        p("s_add_u32 s42, s42, s41")
        for q in range(4):
            p("buffer_load_dwordx4 %s, v%d, s[36:39], s42 offen offset:%d sc1" % (vr(96 + 16 * (r - 1) + 4 * q, 4), LN, q * 1024))
    p("s_lshl_b32 s42, s15, 2")
    p("s_add_u32 s42, s42, s14")
    p("s_lshl_b32 s42, s42, 16")
    p("s_lshl_b32 s43, s19, 8")
    p("s_add_u32 s42, s42, s43")
    p("s_lshl_b32 s43, s18, 6")
    p("s_add_u32 s42, s42, s43")
    for r in range(3):
        for k in range(16):
            p("v_add_f32 v%d, v%d, v%d" % (64 + k, 64 + k, 96 + 16 * r + k))
    for k in range(8):
        p("v_cvt_pk_bf16_f32 v%d, v%d, v%d" % (80 + k, 64 + 2 * k, 64 + 2 * k + 1))
    for pr in range(2):
        p("v_permlane32_swap_b32 v%d, v%d" % (80 + 4 * pr, 80 + 4 * pr + 2))
        p("v_permlane32_swap_b32 v%d, v%d" % (80 + 4 * pr + 1, 80 + 4 * pr + 3))
        p("buffer_store_dwordx4 %s, v%d, s[84:87], s42 offen offset:%d" % (vr(80 + 4 * pr, 4), T0, pr * 32))
    if opts.get("stamp"):
        p("s_waitcnt vmcnt(0)")
    stamp(p, opts)
    stamp_flush(p, opts, T1)
    p("s_branch K1_END")
    p.auto_wait = False
    p.label("SIG1")
    p("s_mov_b32 s90, 0")
    p("s_waitcnt vmcnt(0)")
    p("v_mov_b32 v%d, 1" % X1)
    p("s_mov_b64 exec, 1")
    p("ds_add_rtn_u32 v%d, v%d, v%d offset:%d" % (X2, FA, X1, F_C1))
    p("ds_read_b64 %s, v%d offset:%d" % (vr(T0, 2), FA, F_NONCE))
    p("s_waitcnt lgkmcnt(0)")
    p("v_readfirstlane_b32 s53, v%d" % X2)
    p("s_cmp_lg_u32 s53, 3")
    p("s_cbranch_scc1 NOSIG1")
    p("v_mov_b32 v%d, 0" % X2)
    p("buffer_store_dwordx2 %s, v%d, s[36:39], s56 offen sc1" % (vr(T0, 2), X2))
    p.label("NOSIG1")
    p("s_mov_b64 exec, -1")
    p("s_branch SIG1_BACK")
    for tag, sc in rare_blocks:
        p.label("RARE_%s" % tag)
        p("v_mov_b32 v%d, v%d" % (X2, X1))
        p("v_permlane32_swap_b32 v%d, v%d" % (X1, X2))
        p("v_max3_f32 v%d, v%d, v%d, 0" % (X1, X1, X2))
        p("v_sub_f32 v%d, 0, v%d" % (X2, X1))
        p("v_exp_f32 v%d, v%d" % (X2, X2))
        for k in range(16):
            p("v_sub_f32 v%d, v%d, v%d" % (NEGM + k, NEGM + k, X1))
        for k in range(32):
            p("v_sub_f32 v%d, v%d, v%d" % (sc + k, sc + k, X1))
        p("v_mul_f32 v%d, v%d, v%d" % (L, L, X2))
        for k in range(64):
            p("v_mul_f32 v%d, v%d, v%d" % (O + k, O + k, X2))
        p("s_nop 1")
        p("s_branch BACK_%s" % tag)
    p.auto_wait = True


def build(opts):
    p = Prog()
    gen_kernel(p, opts)
    n = p.pad_hazards()
    sys.stderr.write("hazard nop states inserted: %d\n" % n)
    s = HEADER
    s += "; @launch grid=(256,1,1) block=(512,1,1) lds=%d\n" % LDS_BYTES
    s += '.amdgcn_target "amdgcn-amd-amdhsa--gfx950"\n.text\n'
    s += p.text()
    s += '.section .rodata,"a"\n'
    s += kd(NAME + "_kernel", 256, 96)
    return s


if __name__ == "__main__":
    out = sys.argv[1]
    opts = {}
    for a in sys.argv[2:]:
        k, v = a.split("=")
        opts[k] = float(v) if "." in v else int(v)
    open(out, "w").write(build(opts))
```

```python
import sys, math, struct
from asmlib import Prog, Inst, check_order
from gen import f32bits, vr, interleave, HEADER, kd, NAME
from gen5 import stamp_init, stamp, stamp_flush, uid

SLOT = 16384
LDS_BYTES = 160 * 1024
KBASE = 0
VBASE = 4 * SLOT
MISC = 9 * SLOT
F_LP, F_CP, F_C1, F_C2, F_G1, F_G2, F_NONCE = 0, 16, 32, 36, 40, 44, 48
F_MB = 64
FLAG_OFF = 48 << 20
PART_OFF = 16 << 20
SPIN_MAX = 1 << 21


def gen_kernel(p, opts):
    K = NAME + "_kernel"
    p.raw(".globl %s\n.p2align 8\n.type %s,@function" % (K, K))
    p.label(K)
    p("s_cmp_ge_u32 s2, 256")
    p("s_cbranch_scc1 K1_END")
    p("s_load_dwordx4 s[4:7], s[0:1], 0")
    p("s_load_dwordx4 s[8:11], s[0:1], 16")
    p("s_load_dwordx4 s[68:71], s[0:1], 32")
    p("s_load_dwordx2 s[72:73], s[0:1], 48")
    p("s_load_dwordx2 s[12:13], s[0:1], 56")
    p("v_lshrrev_b32 v1, 6, v0")
    p("v_and_b32 v0, 63, v0")
    p("v_readfirstlane_b32 s14, v1")
    p("s_and_b32 s40, s2, 7")
    p("s_lshr_b32 s41, s2, 3")
    p("s_lshr_b32 s15, s40, 2")
    p("s_lshl_b32 s15, s15, 2")
    p("s_lshr_b32 s42, s41, 3")
    p("s_add_u32 s15, s15, s42")
    p("s_and_b32 s18, s40, 3")
    if opts.get("hgx"):
        p("s_xor_b32 s18, s18, 1")
    p("s_and_b32 s19, s41, 7")
    p("s_lshl_b32 s16, s18, 3")
    p("s_add_u32 s16, s16, s19")
    p("s_lshl_b32 s17, s15, 5")
    p("s_add_u32 s17, s17, s16")
    p("v_lshlrev_b32 v2, 2, v0")
    p("v_add_u32 v2, %d, v2" % MISC)
    p("v_mov_b32 v3, 0")
    p("ds_write_b32 v2, v3")
    p("s_waitcnt lgkmcnt(0)")
    p.reset_tracking()
    p("s_mov_b32 s36, s12")
    p("s_mov_b32 s37, s13")
    p("s_mov_b32 s38, 0x4000000")
    p("s_mov_b32 s39, 0x20000")
    p("s_mov_b32 s76, s72")
    p("s_mov_b32 s77, s73")
    p("s_mov_b32 s78, 256")
    p("s_mov_b32 s79, 0x20000")
    p("s_mov_b32 s58, %d" % SPIN_MAX)
    if opts.get("bar0", 0):
        p("s_barrier")
    stamp_init(p, opts)
    stamp(p, opts)
    if opts.get("stamp"):
        p("s_getreg_b32 s60, hwreg(HW_REG_XCC_ID)")
        p("v_writelane_b32 v254, s60, 60")
    p("s_cmp_ge_u32 s14, 4")
    p("s_cbranch_scc1 K1_LOADER")
    gen_compute(p, opts)
    p.label("K1_LOADER")
    p.reset_tracking()
    gen_loader(p, opts)
    p.label("K1_END")
    p("s_endpgm")


def gen_loader(p, opts):
    p.auto_wait = False
    p("s_sub_u32 s40, s14, 4")
    p("s_lshl_b32 s41, s40, 12")
    p("s_mov_b32 s45, 0")
    p("s_mov_b32 s48, 0")
    p("s_lshl_b32 s42, s15, 18")
    p("s_add_u32 s20, s4, s42")
    p("s_addc_u32 s21, s5, 0")
    p("s_mov_b32 s22, 0x40000")
    p("s_mov_b32 s23, 0x20000")
    p("s_lshl_b32 s42, s16, 8")
    p("s_add_u32 s24, s10, s42")
    p("s_addc_u32 s25, s11, 0")
    p("s_sub_u32 s26, 0x800000, s42")
    p("s_mov_b32 s27, 0x20000")
    p("v_lshrrev_b32 v1, 4, v0")
    p("v_and_b32 v2, 15, v0")
    p("v_lshrrev_b32 v3, 3, v0")
    p("v_and_b32 v4, 7, v0")
    p("v_lshlrev_b32 v5, 2, v1")
    p("v_xor_b32 v5, v5, v2")
    p("v_lshlrev_b32 v6, 4, v5")
    p("s_lshl_b32 s42, s40, 5")
    for ii in range(4):
        p("v_add_u32 v5, %d, v1" % (4 * (ii & 1)))
        p("v_xor_b32 v5, v5, v4")
        p("v_lshlrev_b32 v5, 4, v5")
        p("v_add_u32 v7, s42, v3")
        p("v_add_u32 v7, %d, v7" % (8 * ii))
        p("v_lshl_add_u32 v5, v7, 11, v5")
        if ii:
            p("v_subrev_u32 v%d, %d, v5" % (20 + ii, ii * 1024))
        else:
            p("v_mov_b32 v20, v5")
    p("s_lshl_b32 s42, s40, 4")
    for ii in range(4):
        p("v_add_u32 v5, s42, v1")
        p("v_add_u32 v5, %d, v5" % (4 * ii))
        p("v_xor_b32 v8, %d, v6" % (32 * ((ii >> 1) & 1)))
        p("v_lshl_add_u32 v7, v5, 13, v8")
        p("v_lshl_add_u32 v5, v5, 11, v8")
        p("v_subrev_u32 v%d, %d, v7" % (16 + ii, ii * 1024))
        p("v_subrev_u32 v%d, %d, v5" % (24 + ii, ii * 1024))
    p("s_lshl_b32 s52, s19, 1")
    p("s_and_b32 s53, s15, 3")
    p("s_lshl_b32 s53, s53, 2")
    p("s_add_u32 s52, s52, s53")
    rot = opts.get("rot", 1)
    if opts.get("ab", 0):
        p("s_lshl_b32 s52, s19, 1")
        p("s_and_b32 s53, s15, 1")
        p("s_lshl_b32 s53, s53, 3")
        p("s_add_u32 s52, s52, s53")
    if rot == 0:
        p("s_mov_b32 s52, 0")
    elif rot == 2:
        p("s_and_b32 s52, s19, 3")
        p("s_and_b32 s53, s15, 3")
        p("s_add_u32 s52, s52, s53")
    elif rot == 3:
        p("s_lshr_b32 s52, s19, 1")
        p("s_and_b32 s53, s15, 1")
        p("s_lshl_b32 s53, s53, 2")
        p("s_add_u32 s52, s52, s53")
    p("v_mov_b32 v9, %d" % MISC)
    p("s_lshl_b32 s42, s40, 2")
    p("v_add_u32 v8, s42, v9")

    def dma(v0r, single, srd, pol):
        for ii in range(4):
            p("buffer_load_dwordx4 v%d, %s, s43 offen offset:%d%s lds" % (v0r if single else v0r + ii, srd, ii * 1024, pol))

    def q_issue(nreg, px="", pw=""):
        p("s_and_b32 s47, %s, 3" % nreg)
        p("s_lshl_b32 s47, s47, 14")
        p("s_add_u32 s47, s47, s41")
        p("s_add_u32 s44, s52, %s" % nreg)
        p("s_and_b32 s44, s44, 15")
        p("s_mov_b32 m0, s47")
        p("s_lshl_b32 s43, s44, 7")
        dma(20, False, "s[20:23]", px)
        p("s_add_u32 m0, s47, %d" % VBASE)
        p("s_lshl_b32 s43, s44, 19")
        dma(16, False, "s[24:27]", pw)

    AB = opts.get("ab", 0)
    NR = opts.get("nr", 14)
    stream = [("K", 0)]
    for i in range(16):
        if i < 15:
            stream.append(("K", i + 1))
        stream.append(("V", i))

    def reg_load(t):
        kind, j = stream[t]
        r0 = 32 + 16 * (t % NR)
        p("s_mov_b32 s43, %d" % (j * 16384))
        for ii in range(4):
            v, srd = (10 + ii, "s[28:31]") if kind == "K" else (14, "s[32:35]")
            p("buffer_load_dwordx4 %s, v%d, %s, s43 offen offset:%d nt" % (vr(r0 + 4 * ii, 4), v, srd, ii * 1024))

    def reg_store(t):
        kind, j = stream[t]
        r0 = 32 + 16 * (t % NR)
        a = 15 if kind == "K" else 3
        for ii in range(4):
            p("ds_write_b128 v%d, %s offset:%d" % (a, vr(r0 + 4 * ii, 4), (j % 4) * SLOT + ii * 1024))

    p("s_lshl_b32 s42, s17, 18")
    p("s_add_u32 s28, s6, s42")
    p("s_addc_u32 s29, s7, 0")
    p("s_mov_b32 s30, 0x40000")
    p("s_mov_b32 s31, 0x20000")
    p("s_add_u32 s32, s8, s42")
    p("s_addc_u32 s33, s9, 0")
    p("s_mov_b32 s34, 0x40000")
    p("s_mov_b32 s35, 0x20000")
    for ii in range(4):
        p("v_add_u32 v5, %d, v1" % (4 * ii))
        p("v_xor_b32 v5, v5, v2")
        p("v_lshlrev_b32 v5, 4, v5")
        p("v_lshl_add_u32 v5, v1, 8, v5")
        p("v_add_u32 v%d, s41, v5" % (10 + ii))
    p("v_lshl_add_u32 v5, v1, 8, v6")
    p("v_add_u32 v14, s41, v5")
    p("v_lshlrev_b32 v5, 4, v0")
    p("v_add_u32 v15, s41, v5")
    p("s_lshl_b32 s42, s18, 21")
    p("s_lshl_b32 s43, s19, 8")
    p("s_add_u32 s42, s42, s43")
    p("s_add_u32 s80, s68, s42")
    p("s_addc_u32 s81, s69, 0")
    p("s_sub_u32 s82, 0x800000, s42")
    p("s_mov_b32 s83, 0x20000")
    p("s_lshl_b32 s54, s19, 1")
    p("s_lshl_b32 s55, s18, 3")
    p("s_lshl_b32 s42, s15, 5")
    p("s_add_u32 s55, s55, s42")
    p("s_lshl_b32 s55, s55, 15")
    p("v_add_u32 v3, %d, v15" % VBASE)
    if AB:
        p("s_bitcmp1_b32 s15, 1")
        p("s_cbranch_scc0 A_START")
        if opts.get("bwpf", 0):
            for n in range(4):
                p("s_add_u32 s44, s52, %d" % n)
                p("s_and_b32 s44, s44, 15")
                p("s_lshl_b32 s43, s44, 19")
                for ii in range(4):
                    p("buffer_load_dwordx4 %s, v%d, s[24:27], s43 offen offset:%d" % (vr(32 + 16 * n + 4 * ii, 4), 16 + ii, ii * 1024))
            p("s_waitcnt vmcnt(4)")
        for t in range(NR):
            reg_load(t)
        p("s_waitcnt vmcnt(%d)" % opts.get("bwait", 8))
        p.label("A_START")
    START = opts.get("start", 2)

    def qi(n):
        p("s_mov_b32 s50, %d" % n)
        m = opts.get("qnt", 0)
        q_issue("s50", " nt" if (m & 1 and n < 2) else "", " nt" if (m & 2 and n < 4) else "")

    def pf(kind, sreg, r0):
        p("s_lshl_b32 s43, %s, %d" % (sreg, 7 if kind == "X" else 19))
        for ii in range(4):
            v, srd = (20 + ii, "s[20:23]") if kind == "X" else (16 + ii, "s[24:27]")
            p("buffer_load_dwordx4 %s, v%d, %s, s43 offen offset:%d" % (vr(r0 + 4 * ii, 4), v, srd, ii * 1024))

    if START == 0:
        for n in range(4):
            qi(n)
        p("s_waitcnt vmcnt(24)")
        p("s_barrier")
        p("s_mov_b32 s50, 4")
    elif START == 2:
        qi(0); qi(1)
        p("s_waitcnt vmcnt(8)")
        p("s_barrier")
        qi(2)
        p("s_waitcnt vmcnt(8)")
        p("s_barrier")
        qi(3); qi(4)
        p("s_mov_b32 s50, 5")
    else:
        p("s_mov_b32 s52, 0")
        p("s_and_b32 s53, s15, 3")
        qi(0); qi(1)
        p("s_waitcnt vmcnt(8)")
        p("s_barrier")
        qi(2)
        p("s_waitcnt vmcnt(8)")
        p("s_barrier")
        qi(3)
        p("s_add_u32 s46, s53, 4")
        pf("W", "s46", 232)
        p("s_add_u32 s46, s19, 4")
        pf("X", "s46", 232)
        p("s_waitcnt vmcnt(16)")
        p("s_barrier")
        p("s_add_u32 s46, s53, 8")
        pf("W", "s46", 232)
        p("s_waitcnt vmcnt(12)")
        p("s_barrier")
        p("s_and_b32 s46, s19, 3")
        p("s_add_u32 s46, s46, 12")
        pf("X", "s46", 232)
        p("s_add_u32 s46, s53, 12")
        pf("W", "s46", 232)
        qi(4); qi(5); qi(6)
        p("s_mov_b32 s50, 7")
    if opts.get("burst", 0) == 3:
        p("s_lshr_b32 s95, s2, 3")
        p("s_add_u32 s95, s95, s2")
        p("s_and_b32 s95, s95, %d" % opts.get("bmask", 7))
        p("s_add_u32 s95, s95, %d" % opts.get("burst0", 8))
        p("s_and_b32 s56, s15, 3")
        p("s_lshl_b32 s56, s56, 2")
    p.label("LA")
    p("s_waitcnt vmcnt(16)")
    p("s_barrier")
    q_issue("s50")
    if opts.get("burst", 0) == 3:
        p("s_cmp_lg_u32 s95, s50")
        p("s_cbranch_scc1 NOEB")
        for n in range(4):
            p("s_add_u32 s43, s56, %d" % n)
            p("s_lshl_b32 s43, s43, 17")
            for ii in range(4):
                p("buffer_load_dwordx4 %s, v%d, s[80:83], s43 offen offset:%d" % (vr(32 + 16 * n + 4 * ii, 4), 24 + ii, ii * 1024))
        p.label("NOEB")
    p("s_add_u32 s50, s50, 1")
    p("s_cmp_lt_u32 s50, 16")
    p("s_cbranch_scc1 LA")
    stamp(p, opts)

    KVP = {0: "", 1: " nt", 2: " sc1", 3: " sc1 nt", 4: " sc0 sc1 nt"}[opts.get("kvp", 1)]
    KR = opts.get("kvrot", 0)
    if KR == 1:
        p("s_mul_i32 s96, s17, 5")
    elif KR == 2:
        p("s_lshr_b32 s96, s2, 3")
        p("s_add_u32 s96, s96, s2")
    elif KR == 3:
        p("s_lshl_b32 s96, s18, 2")
        p("s_add_u32 s96, s96, s15")

    def kvoff(j):
        if KR:
            p("s_add_u32 s43, s96, %d" % j)
            p("s_and_b32 s43, s43, 15")
            p("s_lshl_b32 s43, s43, 14")
        else:
            p("s_mov_b32 s43, %d" % (j * 16384))

    def k_issue(j):
        if isinstance(j, int):
            p("s_add_u32 m0, s41, %d" % (KBASE + (j % 4) * SLOT))
            kvoff(j)
        dma(10, False, "s[28:31]", KVP)

    def v_issue(j):
        if isinstance(j, int):
            p("s_add_u32 m0, s41, %d" % (VBASE + (j % 4) * SLOT))
            kvoff(j)
        dma(14, True, "s[32:35]", KVP)

    if AB:
        p("s_bitcmp1_b32 s15, 1")
        p("s_cbranch_scc1 B_KV")
    def z_issue(t):
        p("s_add_u32 m0, s41, %d" % (VBASE + (t % 4) * SLOT))
        p("s_add_u32 s43, s54, %d" % t)
        p("s_and_b32 s43, s43, 15")
        p("s_lshl_b32 s43, s43, 17")
        dma(24, False, "s[80:83]", " nt" if (opts.get("znt") and t < 4) else "")

    def o_issue(t):
        p("s_add_u32 m0, s41, %d" % (KBASE + (t % 4) * SLOT))
        p("s_add_u32 s43, s54, %d" % t)
        p("s_and_b32 s43, s43, 15")
        p("s_lshl_b32 s43, s43, 14")
        p("s_add_u32 s43, s43, s55")
        dma(15, True, "s[36:39]", " sc1")

    def zpf(n, rb=None):
        p("s_add_u32 s43, s56, %d" % n)
        p("s_and_b32 s43, s43, 15")
        p("s_lshl_b32 s43, s43, 17")
        for ii in range(4):
            p("buffer_load_dwordx4 %s, v%d, s[80:83], s43 offen offset:%d%s" % (vr((32 + 16 * n if rb is None else rb) + 4 * ii, 4), 24 + ii, ii * 1024, " nt" if opts.get("znt") else ""))

    p("s_and_b32 s56, s15, 3")
    p("s_lshl_b32 s56, s56, 2")
    p("s_add_u32 s56, s56, s54")
    p("s_add_u32 s56, s56, 2")
    p("v_mov_b32 v7, 0")
    p("s_cmp_lg_u32 s2, 0")
    p("s_cbranch_scc1 NONONCE")
    p("s_cmp_lg_u32 s14, 7")
    p("s_cbranch_scc1 NONONCE")
    p("s_memrealtime s[46:47]")
    p("s_waitcnt lgkmcnt(0)")
    p("s_or_b32 s46, s46, 1")
    p("v_mov_b32 v4, s46")
    p("v_mov_b32 v5, s47")
    p("v_mov_b32 v7, 0")
    p("s_mov_b64 exec, 1")
    p("buffer_store_dwordx2 v[4:5], v7, s[76:79], 0 offen sc1")
    p("s_mov_b64 exec, -1")
    p("s_waitcnt vmcnt(0)")
    p.label("NONONCE")
    W = opts.get("kvw", 12)
    SPF = opts.get("spf", 0)
    BURST = opts.get("burst", 0)
    p("s_lshr_b32 s95, s2, 3")
    p("s_add_u32 s95, s95, s2")
    p("s_and_b32 s95, s95, 7")
    p("s_add_u32 s95, s95, %d" % opts.get("burst0", 18))
    p("s_and_b32 s57, s15, 3")
    p("s_lshl_b32 s57, s57, 2")
    p("s_add_u32 s57, s57, s54")
    groups = []
    for t, (kind, j) in enumerate(stream):
        if kind == "K":
            groups.append((("K", j), (lambda j=j: k_issue(j)), 13 + j, 4))
        else:
            if SPF:
                def vpf(j=j):
                    v_issue(j)
                    for q in range(j * SPF, min(16, (j + 1) * SPF)):
                        p("s_add_u32 s43, s57, %d" % (q // 4))
                        p("s_and_b32 s43, s43, 15")
                        p("s_lshl_b32 s43, s43, 17")
                        p("buffer_load_dwordx4 %s, v%d, s[80:83], s43 offen offset:%d" % (vr(32 + 4 * q, 4), 24 + q % 4, (q % 4) * 1024))
                npf = max(0, min(16, (j + 1) * SPF) - j * SPF)
                groups.append((("V", j), vpf, (13 + j) if j < 4 else (14 + j), 4 + npf))
            else:
                groups.append((("V", j), (lambda j=j: v_issue(j)), (13 + j) if j < 4 else (14 + j), 4))
    def nonce_load():
        p("buffer_load_dwordx2 v[28:29], v7, s[76:79], 0 offen sc1")
        if not SPF and not BURST:
            zpf(0)
    groups.append((("pf", 0), nonce_load, 0, 1 if (SPF or BURST) else 5))
    groups.append((("Z", 0), (lambda: z_issue(0)), 30, 4))
    if not SPF and not BURST:
        groups.append((("pf", 1), (lambda: zpf(1)), 0, 4))
    groups.append((("Z", 1), (lambda: z_issue(1)), 31, 4))
    if not SPF and not BURST:
        groups.append((("pf", 2), (lambda: zpf(2)), 0, 4))
        groups.append((("pf", 3), (lambda: zpf(3)), 0, 4))
    out = [("Q", 13)] * 8 + [("Q", 14)] * 8 + [("Q", 15)] * 8
    gi = [0]

    def wait_until(pred):
        last = -1
        for i, e in enumerate(out):
            if pred(e):
                last = i
        if last >= 0:
            n = len(out) - 1 - last
            p("s_waitcnt vmcnt(%d)" % n)
            del out[:last + 1]

    def issue_next(throttle=True):
        name, emit, fr, nl = groups[gi[0]]
        if throttle and len(out) > W - 4:
            p("s_waitcnt vmcnt(%d)" % (W - 4))
            del out[:len(out) - (W - 4)]
        emit()
        out.extend([name] * nl)
        gi[0] += 1

    for n in range(13, 33):
        need = [("Q", n)] if n < 16 else ([("K", 0)] if n == 16 else ([("K", n - 16), ("V", n - 17)] if n < 32 else [("V", 15)]))
        names = [x[0] for x in groups]
        lastneed = max([names.index(x) for x in need if x in names] + [-1])
        while gi[0] < len(groups) and gi[0] <= lastneed + W // 4 and groups[gi[0]][2] <= n - 1:
            issue_next(throttle=(n > 16))
        wait_until(lambda e: e in need)
        p("s_barrier")
        if BURST == 1 and opts.get("burst0", 18) <= n < opts.get("burst0", 18) + 8:
            p("s_cmp_lg_u32 s95, %d" % n)
            p("s_cbranch_scc1 NOBURST_%d" % n)
            for q in range(4):
                zpf(q)
            p.label("NOBURST_%d" % n)
        if n == 28:
            stamp(p, opts)
    while gi[0] < len(groups):
        issue_next(throttle=False)
    p.label("JOIN")
    p("s_lshl_b32 s42, s15, 2")
    p("s_add_u32 s42, s42, s18")
    p("s_lshl_b32 s42, s42, 7")
    p("s_add_u32 s42, s42, 0x%x" % FLAG_OFF)
    p("v_and_b32 v5, 7, v0")
    p("v_lshlrev_b32 v5, 3, v5")
    p("s_lshl_b32 s92, 1, s19")
    p("s_waitcnt vmcnt(0)")
    p.label("NONCE_CHK")
    p("v_cmp_eq_u32 vcc, 0, v28")
    p("s_cbranch_vccz NONCE_OK")
    p("s_sleep 8")
    p("buffer_load_dwordx2 v[28:29], v7, s[76:79], 0 offen sc1")
    p("s_waitcnt vmcnt(0)")
    p("s_sub_u32 s58, s58, 1")
    p("s_cmp_gt_i32 s58, 0")
    p("s_cbranch_scc1 NONCE_CHK")
    p.label("NONCE_OK")
    p("s_mov_b64 exec, 1")
    p("ds_write_b64 v9, v[28:29] offset:%d" % F_NONCE)
    p("s_mov_b64 exec, -1")

    p("s_mov_b32 s94, 0")
    p("v_mov_b32 v100, 0")
    p("v_mov_b32 v101, 0")

    def decide(seq, blocking, tag, keep):
        p("s_lshl_b32 s47, %s, 2" % seq)
        p("v_add_u32 v6, s47, v9")
        p("s_cmp_lg_u32 s14, 4")
        p("s_cbranch_scc1 DR_%s" % tag)
        if keep:
            p("s_waitcnt vmcnt(8)")
            p("v_cmp_eq_u64 vcc, v[100:101], v[28:29]")
            p("s_and_b32 s46, vcc_lo, 0xff")
            p("s_or_b32 s94, s94, s46")
        p("s_andn2_b32 s46, s94, s92")
        p("s_cbranch_scc1 DH_%s" % tag)
        p.label("DP_%s" % tag)
        p("buffer_load_dwordx2 v[30:31], v5, s[36:39], s42 offen sc1")
        p("s_waitcnt vmcnt(0)")
        p("v_cmp_eq_u64 vcc, v[30:31], v[28:29]")
        p("s_and_b32 s94, vcc_lo, 0xff")
        p("s_andn2_b32 s46, s94, s92")
        p("s_cbranch_scc1 DH_%s" % tag)
        if blocking:
            p("s_sleep %d" % opts.get("psleep", 1))
            p("s_sub_u32 s58, s58, 1")
            p("s_cmp_gt_i32 s58, 0")
            p("s_cbranch_scc1 DP_%s" % tag)
            p("s_andn2_b32 s46, 0xff, s92")
        else:
            p("s_mov_b32 s93, 15")
            p("s_branch DW_%s" % tag)
        p.label("DH_%s" % tag)
        p("s_lshl_b32 s47, s46, 8")
        p("s_or_b32 s47, s47, s46")
        p("s_lshr_b32 s47, s47, s19")
        p("s_ff1_i32_b32 s47, s47")
        p("s_add_u32 s47, s47, s19")
        p("s_and_b32 s93, s47, 7")
        p.label("DW_%s" % tag)
        p("s_add_u32 s47, s93, 1")
        p("v_mov_b32 v4, s47")
        p("s_mov_b64 exec, 1")
        p("ds_write_b32 v6, v4 offset:%d" % F_MB)
        p("s_mov_b64 exec, -1")
        p("s_branch DD_%s" % tag)
        p.label("DR_%s" % tag)
        p("ds_read_b32 v4, v6 offset:%d" % F_MB)
        p("s_waitcnt lgkmcnt(0)")
        p("v_readfirstlane_b32 s47, v4")
        p("s_sub_u32 s93, s47, 1")
        p("s_and_b32 s93, s93, 15")
        p("s_sub_u32 s58, s58, 1")
        p("s_cmp_lt_i32 s58, 1")
        p("s_cbranch_scc1 DD_%s" % tag)
        p("s_cmp_eq_u32 s47, 0")
        p("s_cbranch_scc1 DR_%s" % tag)
        p.label("DD_%s" % tag)

    def mark():
        p("s_lshl_b32 s47, 1, s93")
        p("s_or_b32 s92, s92, s47")

    def tile_issue(slot, half):
        p("s_lshl_b32 s44, s93, 1")
        p("s_add_u32 s44, s44, %s" % half)
        if isinstance(slot, int):
            p("s_add_u32 s47, s41, %d" % (slot * SLOT))
        else:
            p("s_add_u32 s47, s41, %s" % slot)
        p("s_mov_b32 m0, s47")
        p("s_lshl_b32 s43, s44, 14")
        p("s_add_u32 s43, s43, s55")
        dma(15, True, "s[36:39]", " sc1")
        p("s_add_u32 m0, s47, %d" % VBASE)
        p("s_lshl_b32 s43, s44, 17")
        dma(24, False, "s[80:83]", "")

    decide(1, False, "E", 0)
    p("s_cmp_eq_u32 s93, 15")
    p("s_cbranch_scc1 NOT_EARLY")
    mark()
    tile_issue(2, 0)
    p.label("NOT_EARLY")
    p("s_waitcnt lgkmcnt(0)")
    stamp(p, opts)
    p("s_barrier")
    p("s_cmp_eq_u32 s93, 15")
    p("s_cbranch_scc1 NOT_EARLY2")
    p("buffer_load_dwordx2 v[100:101], v5, s[36:39], s42 offen sc1")
    tile_issue(3, 1)
    p.label("NOT_EARLY2")
    p("s_barrier")
    p("s_cmp_lg_u32 s93, 15")
    p("s_cbranch_scc1 LATE_SKIP")
    decide(2, True, "L", 0)
    mark()
    tile_issue(2, 0)
    tile_issue(3, 1)
    p.label("LATE_SKIP")
    stamp(p, opts)
    p("s_mov_b32 s50, 4")
    p("s_branch LC_IN")
    p.label("LC")
    p("s_waitcnt vmcnt(16)")
    p("s_barrier")
    p.label("LC_IN")
    p("s_bitcmp1_b32 s50, 0")
    p("s_cbranch_scc1 LC_ODD")
    decide("s50", True, "C", 1)
    mark()
    p("s_branch LC_ISSUE")
    p.label("LC_ODD")
    p("s_cmp_lg_u32 s14, 4")
    p("s_cbranch_scc1 LC_ISSUE")
    p("buffer_load_dwordx2 v[100:101], v5, s[36:39], s42 offen sc1")
    p.label("LC_ISSUE")
    p("s_and_b32 s48, s50, 3")
    p("s_lshl_b32 s48, s48, 14")
    p("s_and_b32 s49, s50, 1")
    tile_issue("s48", "s49")
    p("s_add_u32 s50, s50, 1")
    p("s_cmp_lt_u32 s50, 16")
    p("s_cbranch_scc1 LC")
    p("s_waitcnt vmcnt(16)")
    p("s_barrier")
    p("s_waitcnt vmcnt(8)")
    p("s_barrier")
    p("s_waitcnt vmcnt(0)")
    p("s_barrier")
    stamp(p, opts)
    if opts.get("pwf", 0):
        p("s_branch LDONE")
    p("s_cmp_lg_u32 s14, 4")
    p("s_cbranch_scc1 LDONE")
    p("s_barrier")
    p("s_lshl_b32 s42, s15, 3")
    p("s_add_u32 s42, s42, s19")
    p("s_lshl_b32 s42, s42, 7")
    p("s_add_u32 s42, s42, 0x%x" % (FLAG_OFF + 8192))
    p("s_lshl_b32 s43, s18, 3")
    p("s_add_u32 s43, s43, s42")
    p("v_and_b32 v5, 3, v0")
    p("v_lshlrev_b32 v5, 3, v5")
    p("s_barrier")
    p("s_mov_b64 exec, 1")
    p("buffer_store_dwordx2 v[28:29], v7, s[36:39], s43 offen sc1")
    p("s_mov_b64 exec, -1")
    p.label("POLL2")
    p("buffer_load_dwordx2 v[30:31], v5, s[36:39], s42 offen sc1")
    p("s_waitcnt vmcnt(0)")
    p("v_cmp_ne_u64 vcc, v[30:31], v[28:29]")
    p("s_cbranch_vccz POLL2_OK")
    p("s_sleep %d" % opts.get("psleep", 1))
    p("s_sub_u32 s58, s58, 1")
    p("s_cmp_gt_i32 s58, 0")
    p("s_cbranch_scc1 POLL2")
    p.label("POLL2_OK")
    p("s_barrier")
    p.label("LDONE")
    stamp(p, opts)
    stamp_flush(p, opts, 5)
    if AB:
        p("s_branch K1_END")
        p.label("B_KV")
        p("s_and_b32 s56, s15, 3")
        p("s_lshl_b32 s56, s56, 2")
        p("s_add_u32 s56, s56, s54")
        p("s_add_u32 s56, s56, 2")
        p("v_mov_b32 v7, 0")
        p("s_waitcnt vmcnt(16)")
        p("s_barrier")
        p("s_waitcnt vmcnt(8)")
        p("s_barrier")
        p("s_waitcnt vmcnt(0)")
        p("s_barrier")
        p.reset_tracking()
        p.auto_wait = True
        nxt = NR
        for n in range(16, 33):
            ts = [0] if n == 16 else ([2 * (n - 17) + 1, 2 * (n - 17) + 2] if n < 32 else [31])
            for t in ts:
                assert t < nxt, (t, nxt, n)
                reg_store(t)
            p("s_waitcnt lgkmcnt(0)")
            p("s_barrier")
            stored = max(ts)
            last_n = opts.get("blast", 29)
            target = NR + int(math.ceil((32 - NR) * (n - 15) / float(last_n - 15)))
            while nxt < 32 and nxt < target and nxt - NR <= stored:
                reg_load(nxt)
                nxt += 1
            if n == 28:
                stamp(p, opts)
            if n == 29:
                p("buffer_load_dwordx2 v[28:29], v7, s[76:79], 0 offen sc1")
                zpf(0, 232)
            if n == 30:
                z_issue(0); zpf(1, 232)
            if n == 31:
                z_issue(1); zpf(2, 232)
            if n == 32:
                zpf(3, 232)
        assert nxt == 32
        p.auto_wait = False
        p("s_branch JOIN")
    p.auto_wait = True


def gen_compute(p, opts):
    O = 0
    Q = 64
    S = [96, 128]
    NEGM = 160
    KF = 176
    NKF = opts.get("nkf", 6)
    KFR = [176 + 4 * i for i in range(6)] + [244]
    L2 = 249
    VF = 200
    KA = 232
    VA = 240
    T0, T1, T2, T3 = 244, 245, 246, 247
    L, CNT, FA, CPA, X1, X2 = 248, 249, 250, 251, 252, 253
    XB = [64, 80]
    WB = [96, 160]
    XA, WA = 224, 226
    TA, TB, TC, TD = 236, 237, 238, 239
    THR = opts.get("thr", 8.0)

    def lane_to(r):
        p("v_mbcnt_lo_u32_b32 v%d, -1, 0" % r)
        p("v_mbcnt_hi_u32_b32 v%d, -1, v%d" % (r, r))

    def lane_parts():
        lane = "v%d" % X1
        p("v_and_b32 v%d, 31, %s" % (TA, lane))
        p("v_lshrrev_b32 v%d, 5, %s" % (TB, lane))
        p("v_bfe_u32 v%d, %s, 2, 2" % (TC, lane))
        p("v_bfe_u32 v%d, %s, 4, 1" % (T1, lane))
        p("v_and_b32 v%d, 3, %s" % (T2, lane))
        p("v_lshlrev_b32 v%d, 3, v%d" % (T2, T2))
        p("v_lshl_add_u32 v%d, v%d, 5, v%d" % (TD, T1, T2))

    def wa_setup():
        lane = "v%d" % X1
        p("v_lshrrev_b32 v%d, 4, %s" % (T0, lane))
        p("v_lshl_add_u32 v%d, v%d, 3, v%d" % (T1, T0, TC))
        p("v_and_b32 v%d, 3, %s" % (T2, lane))
        p("v_lshlrev_b32 v%d, 3, v%d" % (T2, T2))
        p("v_lshl_add_u32 v%d, v%d, 8, v%d" % (T1, T1, T2))
        p("v_add_u32 v%d, %d, v%d" % (T1, VBASE, T1))
        p("v_and_b32 v%d, 1, v%d" % (T2, T0))
        p("v_lshl_add_u32 v%d, v%d, 1, v%d" % (T2, TC, T2))
        for a in range(8):
            p("v_xor_b32 v%d, %d, v%d" % (T3, a, T2))
            p("v_lshl_add_u32 v%d, v%d, 5, v%d" % (WA + a, T3, T1))
        p("v_and_b32 v%d, 15, %s" % (T1, lane))
        p("s_lshl_b32 s40, s14, 5")
        p("v_add_u32 v%d, s40, v%d" % (T1, T1))
        p("v_bfe_u32 v%d, v%d, 1, 3" % (T2, T1))
        for t in range(2):
            p("v_add_u32 v%d, %d, v%d" % (T3, 4 * t, T0))
            p("v_xor_b32 v%d, v%d, v%d" % (T3, T3, T2))
            p("v_lshlrev_b32 v%d, 4, v%d" % (T3, T3))
            p("v_lshl_add_u32 v%d, v%d, 7, v%d" % (XA + t, T1, T3))

    if opts.get("cpf", 1):
        p.raw("    s_getpc_b64 s[60:61]")
        p.label("PCL")
        p.raw("    s_sub_u32 s60, s60, PCL-%s_kernel" % NAME)
        p.raw("    s_subb_u32 s61, s61, 0")
        p("s_mov_b32 s64, s60")
        p("s_mov_b32 s65, s61")
        p.raw("    s_mov_b32 s66, K1_END-%s_kernel" % NAME)
        p("s_mov_b32 s67, 0x20000")
        p("s_lshr_b32 s62, s2, 3")
        p("s_and_b32 s62, s62, 7")
        p("s_lshl_b32 s62, s62, 2")
        p("s_add_u32 s62, s62, s14")
        p("s_lshl_b32 s62, s62, 10")
        p("v_lshlrev_b32 v%d, 4, v0" % T0)
        p("buffer_load_dwordx4 v[100:103], v%d, s[64:67], s62 offen" % T0)
        p.vm = []
    p("v_mov_b32 v%d, v0" % X1)
    p("v_mov_b32 v%d, %d" % (FA, MISC))
    p("s_lshl_b32 s40, s14, 2")
    p("v_add_u32 v%d, s40, v%d" % (CPA, FA))
    p("v_mov_b32 v%d, 0" % CNT)
    lane_parts()
    wa_setup()

    spins = []

    def flag_read():
        return Inst("ds_read_b128 %s, v%d offset:%d" % (vr(T0, 4), FA, F_LP))

    def flag_check(need):
        u = uid()
        p("v_min_u32 v%d, v%d, v%d" % (T0, T0, T1))
        p("v_min3_u32 v%d, v%d, v%d, v%d" % (T0, T0, T2, T3))
        p("v_readfirstlane_b32 s53, v%d" % T0)
        p("s_cmp_ge_u32 s53, %s" % need)
        p("s_cbranch_scc0 SPIN_%d" % u)
        p.label("SPUN_%d" % u)
        spins.append((u, need))

    def done_step(inc="1"):
        p.need([("rd",)])
        p("v_add_u32 v%d, %s, v%d" % (CNT, inc, CNT))
        p("s_mov_b64 exec, 1")
        p("ds_write_b32 v%d, v%d offset:%d" % (CPA, CNT, F_CP))
        p("s_mov_b64 exec, -1")

    def tag_last(rds):
        rds[-1].tokens_out.append(("rd",))

    def gemm_mfmas(s):
        xb, wb = XB[s % 2], WB[s % 2]
        m = []
        for t in range(2):
            for a in range(8):
                for b in range(2):
                    acc = vr(O + 4 * (2 * a + b), 4)
                    m.append(Inst("v_mfma_f32_16x16x32_bf16 %s, %s, %s, %s" % (acc, vr(wb + (t * 8 + a) * 4, 4), vr(xb + (t * 2 + b) * 4, 4), acc)))
        return m

    def g_reads(s):
        off = (s % 4) * SLOT
        xb, wb = XB[s % 2], WB[s % 2]
        r = []
        for t in range(2):
            for b in range(2):
                r.append(Inst("ds_read_b128 %s, v%d offset:%d" % (vr(xb + (t * 2 + b) * 4, 4), XA + t, off + b * 2048)))
            for a in range(8):
                for u in range(2):
                    r.append(Inst("ds_read_b64_tr_b16 %s, v%d offset:%d" % (vr(wb + (t * 8 + a) * 4 + 2 * u, 2), WA + a, off + (32 * t + 4 * u) * 256)))
        return r

    p("s_mov_b32 s88, 0")
    p("s_mov_b32 s90, 0")
    if opts.get("cpf", 1):
        p("s_waitcnt vmcnt(0)")
    p.label("GEMM")
    p.lgkm = []
    for k in range(64):
        p("v_mov_b32 v%d, 0" % (O + k))
    p("s_barrier")
    stamp(p, opts)
    for i in g_reads(0):
        p.add(i)
    p("s_waitcnt lgkmcnt(0)")
    p("s_mov_b32 s51, 4")
    p.label("GLOOP")
    stamp(p, opts)
    RG = opts.get("rgaps", 24)
    for s in range(1, 5):
        rd = g_reads(s)
        mm = gemm_mfmas(s - 1)
        n = len(rd)
        ri = 0
        pre = opts.get("gpre", 2)
        for k, m in enumerate(mm):
            if k == pre:
                p("s_barrier")
            p.add(m)
            if k >= pre:
                kk = k - pre
                hi = min(n, (n * (kk + 1) + RG - 1) // RG)
                for i in rd[ri:hi]:
                    p.add(i)
                ri = max(ri, hi)
        assert ri == n
        p("s_waitcnt lgkmcnt(0)")
        if s == 1:
            p("s_cmp_lg_u32 s90, 0")
            p("s_cbranch_scc1 SIG1")
            p.label("SIG1_BACK")
    p("s_sub_u32 s51, s51, 1")
    p("s_cmp_lg_u32 s51, 0")
    p("s_cbranch_scc1 GLOOP")
    p("s_cmp_lg_u32 s88, 0")
    p("s_cbranch_scc1 TAIL_CONT")
    stamp(p, opts)
    lane = "v%d" % X1
    p("v_and_b32 v%d, 15, %s" % (T1, lane))
    for t in range(8):
        p("v_add_u32 v%d, %d, v%d" % (T2, 2 * t, TB))
        p("v_xor_b32 v%d, v%d, v%d" % (T2, T2, T1))
        p("v_lshlrev_b32 v%d, 4, v%d" % (T2, T2))
        p("v_lshl_add_u32 v%d, v%d, 8, v%d" % (XA + t, TA, T2))
    p("v_lshl_add_u32 v%d, v%d, 2, v%d" % (T2, TB, TC))
    p("v_lshl_add_u32 v%d, v%d, 8, v%d" % (T2, T2, TD))
    for j in range(4):
        p("v_xor_b32 v%d, %d, v%d" % (T0, j, TC))
        p("v_lshl_add_u32 v%d, v%d, 6, v%d" % (T0, T0, T2))
        p("v_add_u32 v%d, %d, v%d" % (VA + j, VBASE, T0))
    for t in range(8):
        p("v_mov_b32 v%d, v%d" % (KA + t, XA + t))
    cval = (128 ** -0.5) * math.log2(math.e)
    p("s_mov_b32 s44, 0x%08x" % f32bits(cval))

    def k_reads(j):
        r = []
        for n in range(16):
            kb, t = n // 8, n % 8
            r.append(Inst("ds_read_b128 %s, v%d offset:%d" % (vr(KFR[n % NKF], 4), KA + t, (j % 4) * SLOT + kb * 8192)))
        return r

    kr0 = k_reads(0)
    tag_last(kr0)
    for i in kr0[:NKF]:
        p.add(i)
    for t in range(8):
        base = O + 8 * t
        for k in range(8):
            p("v_mul_f32 v%d, s44, v%d" % (base + k, base + k))
        for k in range(4):
            p("v_cvt_pk_bf16_f32 v%d, v%d, v%d" % (Q + 4 * t + k, base + 2 * k, base + 2 * k + 1))
    for t in range(8):
        p("v_permlane16_swap_b32 v%d, v%d" % (Q + 4 * t + 0, Q + 4 * t + 2))
        p("v_permlane16_swap_b32 v%d, v%d" % (Q + 4 * t + 1, Q + 4 * t + 3))

    def regs(a, n):
        return [("v", a + k) for k in range(n)]

    def qk_mfmas(sb, first=False):
        m = []
        for n in range(16):
            kb, t = n // 8, n % 8
            c = ("0" if first else vr(NEGM, 16)) if t == 0 else vr(sb + 16 * kb, 16)
            extra = regs(KFR[(n + 1) % NKF], 4) if (n % 2 == 0 and opts.get("pw", 1)) else []
            m.append(Inst("v_mfma_f32_32x32x16_bf16 %s, %s, %s, %s" % (vr(sb + 16 * kb, 16), vr(KFR[n % NKF], 4), vr(Q + 4 * t, 4), c), tokens_in=extra))
        return m

    def v_reads(i):
        r = []
        for n in range(16):
            ks, j = n // 4, n % 4
            for u in range(2):
                r.append(Inst("ds_read_b64_tr_b16 %s, v%d offset:%d" % (vr(VF + 4 * (n % 8) + 2 * u, 2), VA + j, (i % 4) * SLOT + (16 * ks + 8 * u) * 256)))
        return r

    def pv_mfmas(sb):
        m = []
        for n in range(16):
            ks, j = n // 4, n % 4
            extra = regs(VF + 4 * ((n + 1) % 8), 4) if n % 2 == 0 else []
            m.append(Inst("v_mfma_f32_32x32x16_bf16 %s, %s, %s, %s" % (vr(O + 16 * j, 16), vr(VF + 4 * (n % 8), 4), vr(sb + 8 * ks, 4), vr(O + 16 * j, 16)), tokens_in=extra))
        return m

    def exp_group(sb, g):
        b = sb + 8 * g
        ex = [Inst("v_exp_f32 v%d, v%d" % (b + k, b + k)) for k in range(8)]
        if opts.get("l2", 0):
            ad = [Inst("v_add_f32 v%d, v%d, v%d" % ((L, L, b + k) if k % 2 == 0 else (L2, L2, b + k))) for k in range(8)]
        else:
            ad = [Inst("v_add_f32 v%d, v%d, v%d" % (L, L, b + k)) for k in range(8)]
        cv = [Inst("v_cvt_pk_bf16_f32 v%d, v%d, v%d" % (b + k, b + 2 * k, b + 2 * k + 1)) for k in range(4)]
        r = ex + ad + cv
        o = []
        for k in range(8):
            o.append(ex[k])
            if k >= 1:
                o.append(ad[k - 1])
            if k >= 3 and k % 2 == 1:
                o.append(cv[(k - 3) // 2])
        o.append(ad[7])
        o.append(cv[3])
        check_order(r, o)
        return o

    def max_tree(sb):
        r = []
        r.append(Inst("v_max3_f32 v%d, v%d, v%d, v%d" % (X1, sb, sb + 1, sb + 2)))
        r.append(Inst("v_max3_f32 v%d, v%d, v%d, v%d" % (X2, sb + 16, sb + 17, sb + 18)))
        for k in range(3, 15, 2):
            r.append(Inst("v_max3_f32 v%d, v%d, v%d, v%d" % (X1, X1, sb + k, sb + k + 1)))
            r.append(Inst("v_max3_f32 v%d, v%d, v%d, v%d" % (X2, X2, sb + 16 + k, sb + 16 + k + 1)))
        r.append(Inst("v_max3_f32 v%d, v%d, v%d, v%d" % (X1, X1, sb + 15, sb + 31)))
        r.append(Inst("v_max_f32 v%d, v%d, v%d" % (X1, X1, X2)))
        return r

    mm = qk_mfmas(S[0], first=True)
    zero = [Inst("v_mov_b32 v%d, 0" % (O + k)) for k in range(64)] + [Inst("v_mov_b32 v%d, 0" % L), Inst("v_mov_b32 v%d, 0" % L2)]
    seq = []
    zi = 0
    for n in range(16):
        seq.append(mm[n])
        if n + NKF < 16:
            seq.append(kr0[n + NKF])
        seq += zero[zi:zi + 4]; zi += 4
    seq += zero[zi:]
    for i in seq:
        p.add(i)
    for i in max_tree(S[0]):
        p.add(i)
    p("v_mov_b32 v%d, v%d" % (X2, X1))
    p("v_permlane32_swap_b32 v%d, v%d" % (X1, X2))
    p("v_max_f32 v%d, v%d, v%d" % (X1, X1, X2))
    for k in range(16):
        p("v_sub_f32 v%d, 0, v%d" % (NEGM + k, X1))
    for k in range(32):
        p("v_sub_f32 v%d, v%d, v%d" % (S[0] + k, S[0] + k, X1))

    rare_blocks = []

    def iteration(i, tag, qk=True, head=True):
        par = i % 2
        sc, sn = S[par], S[1 - par]
        stamp(p, opts, 2)
        dpv = pv_mfmas(sn)[12:] if head else []
        mt = max_tree(sc) if head else []
        if head:
            p.add(dpv[0])
            for x in mt[:4]:
                p.add(x)
        p("s_waitcnt lgkmcnt(0)")
        p("s_barrier")
        stamp(p, opts, 2)
        kr = k_reads(i + 1) if qk else []
        if head:
            pre = kr[:NKF]
            seq = list(pre[:3])
            fill = pre[3:] + mt[4:]
            per = (len(fill) + 1) // 2
            for k, m in enumerate(dpv[1:]):
                seq.append(m)
                if k < 2:
                    seq += fill[k * per:(k + 1) * per]
            last = seq.pop()
            cmpi = Inst("v_cmp_lt_f32 vcc, 0x%08x, v%d" % (f32bits(THR), X1))
            seq += [cmpi, last]
            check_order(pre + dpv[1:] + mt[4:] + [cmpi], seq)
            for x in seq:
                p.add(x)
            p("s_cbranch_vccnz RARE_%s" % tag)
            p.label("BACK_%s" % tag)
            rare_blocks.append((tag, sc))
        else:
            for x in kr[:NKF]:
                p.add(x)
        vrd = v_reads(i)
        tag_last(vrd)
        pv = pv_mfmas(sc)
        e0, e1, e2, e3 = [exp_group(sc, g) for g in range(4)]
        out = []
        if qk:
            mm = qk_mfmas(sn)
            ref = []
            for n in range(16):
                if n % 2 == 0:
                    for q in (n, n + 1):
                        if q >= NKF:
                            ref.append(kr[q])
                ref.append(mm[n])
            h2 = opts.get("e2split", 8)
            seq_ref = e0 + e1 + e2[:h2] + ref
            fill = e0 + e1 + e2[:h2] + vrd[:16]
            ph1 = interleave(mm, fill, lead=opts.get("lead1", 16))
            res = []
            cnt = 0
            for x in ph1:
                res.append(x)
                if x.kind == "mfma":
                    if cnt + NKF < 16:
                        res.append(kr[cnt + NKF])
                    cnt += 1
            out += res
            rest_e2 = e2[h2:]
        else:
            seq_ref = e0 + e1
            out += vrd[:16] + e0 + e1
            rest_e2 = e2
        fr = []
        npv = 12 if qk else 16
        ref2 = list(rest_e2 + e3)
        for n in range(16):
            if n % 2 == 0:
                ref2 += vrd[2 * n:2 * n + 4]
            if n < npv:
                ref2.append(pv[n])
        seq_ref = seq_ref + ref2 + fr
        a = interleave(pv[:8], rest_e2 + e3[:len(e3) // 2], lead=0)
        bpart = interleave(pv[8:12], e3[len(e3) // 2:] + fr, lead=0)
        res = []
        cnt = 0
        for x in a + bpart:
            res.append(x)
            if x.kind == "mfma":
                if cnt + 8 < 16:
                    res.append(vrd[2 * (cnt + 8)]); res.append(vrd[2 * (cnt + 8) + 1])
                cnt += 1
        out += res
        cpart = pv[12:] if not qk else []
        check_order(seq_ref, out + cpart)
        for x in out + cpart:
            p.add(x)

    if opts.get("cprio"):
        p("s_setprio %d" % opts["cprio"])
    iteration(0, "A0", head=False)
    iteration(1, "A1")
    iteration(2, "A2")
    p("s_mov_b32 s51, 3")
    p.label("K1_LOOP")
    entry_state = [set(x) for x in p.lgkm]
    stamp(p, opts)
    for i in range(3, 7):
        iteration(i, "L%d" % i)
    assert opts.get("stamp") or entry_state == p.lgkm, (entry_state, p.lgkm)
    p("s_sub_u32 s51, s51, 1")
    p("s_cmp_lg_u32 s51, 0")
    p("s_cbranch_scc1 K1_LOOP")
    iteration(15, "Z", qk=False)
    stamp(p, opts)
    AL = X2
    p("v_add_f32 v%d, v%d, v%d" % (L, L, L2))
    p("v_mov_b32 v%d, v%d" % (X1, L))
    p("v_permlane32_swap_b32 v%d, v%d" % (L, X1))
    p("v_add_f32 v%d, v%d, v%d" % (L, L, X1))
    p("v_rcp_f32 v%d, v%d" % (AL, L))
    LN = L
    lane_to(X1)
    p("v_lshlrev_b32 v%d, 4, v%d" % (LN, X1))
    p("s_lshl_b32 s43, s17, 15")
    p("s_lshl_b32 s41, s14, 12")
    p("s_add_u32 s43, s43, s41")
    p("s_add_u32 s42, s43, 16384")
    p("v_and_b32 v%d, 31, v%d" % (T0, X1))
    p("s_lshl_b32 s40, s14, 5")
    p("v_add_u32 v%d, s40, v%d" % (T0, T0))
    p("v_bfe_u32 v%d, v%d, 1, 3" % (T1, T0))
    p("v_lshrrev_b32 v%d, 5, v%d" % (T2, X1))
    for c in range(4):
        p("v_add_u32 v%d, %d, v%d" % (T3, 2 * c, T2))
        p("v_xor_b32 v%d, v%d, v%d" % (T3, T3, T1))
        p("v_lshlrev_b32 v%d, 4, v%d" % (T3, T3))
        p("v_lshl_add_u32 v%d, v%d, 7, v%d" % (KA + c, T0, T3))
    p("v_add_u32 v%d, s41, v%d" % (KA + 4, LN))
    for u in range(8):
        base = O + 8 * u
        for k in range(8):
            p("v_mul_f32 v%d, v%d, v%d" % (base + k, base + k, AL))
        dst = Q + 4 * u
        for k in range(4):
            p("v_cvt_pk_bf16_f32 v%d, v%d, v%d" % (dst + k, base + 2 * k, base + 2 * k + 1))
        p("v_permlane32_swap_b32 v%d, v%d" % (dst, dst + 2))
        p("v_permlane32_swap_b32 v%d, v%d" % (dst + 1, dst + 3))
        p("ds_write_b128 v%d, %s offset:%d" % (KA + u % 4, vr(dst, 4), (u // 4) * SLOT))
        if u % 4 == 3:
            for q in range(4):
                p("ds_read_b128 %s, v%d offset:%d" % (vr(96 + 16 * (u // 4) + 4 * q, 4), KA + 4, (u // 4) * SLOT + q * 1024))
    for u in range(8):
        p("buffer_store_dwordx4 %s, v%d, s[36:39], %s offen offset:%d sc1" % (vr(96 + 4 * u, 4), LN, "s43" if u < 4 else "s42", (u % 4) * 1024))
    lane_parts()
    wa_setup()
    p("s_lshl_b32 s56, s15, 2")
    p("s_add_u32 s56, s56, s18")
    p("s_lshl_b32 s56, s56, 7")
    p("s_lshl_b32 s42, s19, 3")
    p("s_add_u32 s56, s56, s42")
    p("s_add_u32 s56, s56, 0x%x" % FLAG_OFF)
    p("s_waitcnt lgkmcnt(0)")
    stamp(p, opts)
    p("s_mov_b32 s90, 1")
    p("s_mov_b32 s88, 1")
    p("s_branch GEMM")
    p.label("TAIL_CONT")
    p.lgkm = []
    p.vm = []
    stamp(p, opts)
    p("s_lshl_b32 s40, s15, 5")
    p("s_add_u32 s40, s40, s19")
    p("s_lshl_b32 s40, s40, 16")
    p("s_add_u32 s40, s40, 0x%x" % PART_OFF)
    p("s_lshl_b32 s41, s14, 12")
    p("s_add_u32 s40, s40, s41")
    p("s_lshl_b32 s41, s18, 14")
    p("s_add_u32 s41, s41, s40")
    for j in range(4):
        p("s_cmp_eq_u32 s18, %d" % j)
        p("s_cbranch_scc1 SKIPST_%d" % j)
        p("s_add_u32 s42, s41, %d" % (j * 8 * 65536))
        for q in range(4):
            p("buffer_store_dwordx4 %s, v%d, s[36:39], s42 offen offset:%d sc1" % (vr(O + 16 * j + 4 * q, 4), LN, q * 1024))
        p.label("SKIPST_%d" % j)
    for j in range(4):
        p("s_cmp_lg_u32 s18, %d" % j)
        p("s_cbranch_scc1 SKIPMV_%d" % j)
        for k in range(16):
            p("v_mov_b32 v%d, v%d" % (64 + k, O + 16 * j + k))
        p.label("SKIPMV_%d" % j)
    if opts.get("pwf", 0):
        p("ds_read_b64 %s, v%d offset:%d" % (vr(KA, 2), FA, F_NONCE))
        p("s_lshl_b32 s57, s15, 3")
        p("s_add_u32 s57, s57, s19")
        p("s_lshl_b32 s57, s57, 7")
        p("s_lshl_b32 s42, s14, 3")
        p("s_add_u32 s57, s57, s42")
        p("s_add_u32 s57, s57, 0x%x" % (FLAG_OFF + 8192))
        p("s_lshl_b32 s42, s18, 5")
        p("s_add_u32 s42, s42, s57")
        p("v_mov_b32 v%d, 0" % X2)
        p("s_waitcnt vmcnt(0) lgkmcnt(0)")
        p("s_mov_b64 exec, 1")
        p("buffer_store_dwordx2 %s, v%d, s[36:39], s42 offen sc1" % (vr(KA, 2), X2))
        p("s_mov_b64 exec, -1")
    else:
        p("s_waitcnt vmcnt(0)")
        p("s_barrier")
    stamp(p, opts)
    lane_to(X1)
    p("s_mov_b32 s84, s70")
    p("s_mov_b32 s85, s71")
    p("s_mov_b32 s86, 0x200000")
    p("s_mov_b32 s87, 0x20000")
    p("v_and_b32 v%d, 31, v%d" % (T0, X1))
    p("v_lshrrev_b32 v%d, 5, v%d" % (T2, X1))
    p("v_lshlrev_b32 v%d, 11, v%d" % (T0, T0))
    p("v_lshl_add_u32 v%d, v%d, 4, v%d" % (T0, T2, T0))
    p("s_lshl_b32 s41, s18, 19")
    p("s_add_u32 s41, s41, s40")
    if opts.get("pwf", 0):
        p("v_and_b32 v%d, 3, v%d" % (T1, X1))
        p("v_lshlrev_b32 v%d, 5, v%d" % (T1, T1))
        p.auto_wait = False
        p.label("POLLW")
        p("buffer_load_dwordx2 %s, v%d, s[36:39], s57 offen sc1" % (vr(KA + 2, 2), T1))
        p("s_waitcnt vmcnt(0)")
        p("v_cmp_ne_u64 vcc, %s, %s" % (vr(KA + 2, 2), vr(KA, 2)))
        p("s_cbranch_vccz POLLW_OK")
        p("s_sleep %d" % opts.get("psleep", 1))
        p("s_sub_u32 s58, s58, 1")
        p("s_cmp_gt_i32 s58, 0")
        p("s_cbranch_scc1 POLLW")
        p.label("POLLW_OK")
        p.auto_wait = True
        p.vm = []
    else:
        p("s_barrier")
    stamp(p, opts)
    for r in range(1, 4):
        p("s_add_u32 s42, s18, %d" % r)
        p("s_and_b32 s42, s42, 3")
        p("s_lshl_b32 s42, s42, 14")
        p("s_add_u32 s42, s42, s41")
        for q in range(4):
            p("buffer_load_dwordx4 %s, v%d, s[36:39], s42 offen offset:%d sc1" % (vr(96 + 16 * (r - 1) + 4 * q, 4), LN, q * 1024))
    p("s_lshl_b32 s42, s15, 2")
    p("s_add_u32 s42, s42, s14")
    p("s_lshl_b32 s42, s42, 16")
    p("s_lshl_b32 s43, s19, 8")
    p("s_add_u32 s42, s42, s43")
    p("s_lshl_b32 s43, s18, 6")
    p("s_add_u32 s42, s42, s43")
    for r in range(3):
        for k in range(16):
            p("v_add_f32 v%d, v%d, v%d" % (64 + k, 64 + k, 96 + 16 * r + k))
    for k in range(8):
        p("v_cvt_pk_bf16_f32 v%d, v%d, v%d" % (80 + k, 64 + 2 * k, 64 + 2 * k + 1))
    for pr in range(2):
        p("v_permlane16_swap_b32 v%d, v%d" % (80 + 4 * pr, 80 + 4 * pr + 2))
        p("v_permlane16_swap_b32 v%d, v%d" % (80 + 4 * pr + 1, 80 + 4 * pr + 3))
        p("buffer_store_dwordx4 %s, v%d, s[84:87], s42 offen offset:%d%s" % (vr(80 + 4 * pr, 4), T0, pr * 32, {0: "", 1: " sc1", 2: " nt", 3: " sc0 sc1"}[opts.get("opol", 0)]))
    if opts.get("stamp"):
        p("s_waitcnt vmcnt(0)")
    stamp(p, opts)
    stamp_flush(p, opts, T1)
    p("s_branch K1_END")
    p.auto_wait = False
    p.label("SIG1")
    p("s_mov_b32 s90, 0")
    p("s_waitcnt vmcnt(0)")
    p("v_mov_b32 v%d, 1" % X1)
    p("s_mov_b64 exec, 1")
    p("ds_add_rtn_u32 v%d, v%d, v%d offset:%d" % (X2, FA, X1, F_C1))
    p("ds_read_b64 %s, v%d offset:%d" % (vr(T0, 2), FA, F_NONCE))
    p("s_waitcnt lgkmcnt(0)")
    p("v_readfirstlane_b32 s53, v%d" % X2)
    p("s_cmp_lg_u32 s53, 3")
    p("s_cbranch_scc1 NOSIG1")
    p("v_mov_b32 v%d, 0" % X2)
    p("buffer_store_dwordx2 %s, v%d, s[36:39], s56 offen sc1" % (vr(T0, 2), X2))
    p.label("NOSIG1")
    p("s_mov_b64 exec, -1")
    p("s_branch SIG1_BACK")
    for tag, sc in rare_blocks:
        p.label("RARE_%s" % tag)
        p("v_mov_b32 v%d, v%d" % (X2, X1))
        p("v_permlane32_swap_b32 v%d, v%d" % (X1, X2))
        p("v_max3_f32 v%d, v%d, v%d, 0" % (X1, X1, X2))
        p("v_sub_f32 v%d, 0, v%d" % (X2, X1))
        p("v_exp_f32 v%d, v%d" % (X2, X2))
        for k in range(16):
            p("v_sub_f32 v%d, v%d, v%d" % (NEGM + k, NEGM + k, X1))
        for k in range(32):
            p("v_sub_f32 v%d, v%d, v%d" % (sc + k, sc + k, X1))
        p("v_mul_f32 v%d, v%d, v%d" % (L, L, X2))
        p("v_mul_f32 v%d, v%d, v%d" % (L2, L2, X2))
        for k in range(64):
            p("v_mul_f32 v%d, v%d, v%d" % (O + k, O + k, X2))
        p("s_nop 1")
        p("s_branch BACK_%s" % tag)
    p.auto_wait = True


def build(opts):
    p = Prog()
    gen_kernel(p, opts)
    n = p.pad_hazards()
    sys.stderr.write("hazard nop states inserted: %d\n" % n)
    s = HEADER
    s += "; @launch grid=(256,1,1) block=(512,1,1) lds=%d\n" % LDS_BYTES
    s += '.amdgcn_target "amdgcn-amd-amdhsa--gfx950"\n.text\n'
    s += p.text()
    s += '.section .rodata,"a"\n'
    s += kd(NAME + "_kernel", 256, 100)
    return s


if __name__ == "__main__":
    out = sys.argv[1]
    opts = {}
    for a in sys.argv[2:]:
        k, v = a.split("=")
        opts[k] = float(v) if "." in v else int(v)
    open(out, "w").write(build(opts))
```

```python
import sys, math, struct
from asmlib import Prog, Inst, check_order
from gen import f32bits, vr, interleave, HEADER, kd, NAME
from gen5 import stamp_init, stamp, stamp_flush, uid

SLOT = 16384
LDS_BYTES = 160 * 1024
KBASE = 0
VBASE = 4 * SLOT
MISC = 9 * SLOT
F_LP, F_CP, F_C1, F_C2, F_G1, F_G2, F_NONCE = 0, 16, 32, 36, 40, 44, 48
F_MB = 64
FLAG_OFF = 48 << 20
PART_OFF = 16 << 20
SPIN_MAX = 1 << 21


def gen_kernel(p, opts):
    K = NAME + "_kernel"
    p.raw(".globl %s\n.p2align 8\n.type %s,@function" % (K, K))
    p.label(K)
    p("s_cmp_ge_u32 s2, 256")
    p("s_cbranch_scc1 K1_END")
    p("s_load_dwordx4 s[4:7], s[0:1], 0")
    p("s_load_dwordx4 s[8:11], s[0:1], 16")
    p("s_load_dwordx4 s[68:71], s[0:1], 32")
    p("s_load_dwordx2 s[72:73], s[0:1], 48")
    p("s_load_dwordx2 s[12:13], s[0:1], 56")
    p("v_lshrrev_b32 v1, 6, v0")
    p("v_and_b32 v0, 63, v0")
    p("v_readfirstlane_b32 s14, v1")
    p("s_and_b32 s40, s2, 7")
    p("s_lshr_b32 s41, s2, 3")
    p("s_lshr_b32 s15, s40, 2")
    p("s_lshl_b32 s15, s15, 2")
    p("s_lshr_b32 s42, s41, 3")
    p("s_add_u32 s15, s15, s42")
    p("s_and_b32 s18, s40, 3")
    if opts.get("hgx"):
        p("s_xor_b32 s18, s18, 1")
    p("s_and_b32 s19, s41, 7")
    p("s_lshl_b32 s16, s18, 3")
    p("s_add_u32 s16, s16, s19")
    p("s_lshl_b32 s17, s15, 5")
    p("s_add_u32 s17, s17, s16")
    p("v_lshlrev_b32 v2, 2, v0")
    p("v_add_u32 v2, %d, v2" % MISC)
    p("v_mov_b32 v3, 0")
    p("ds_write_b32 v2, v3")
    p("s_waitcnt lgkmcnt(0)")
    p.reset_tracking()
    p("s_mov_b32 s36, s12")
    p("s_mov_b32 s37, s13")
    p("s_mov_b32 s38, 0x4000000")
    p("s_mov_b32 s39, 0x20000")
    p("s_mov_b32 s76, s72")
    p("s_mov_b32 s77, s73")
    p("s_mov_b32 s78, 256")
    p("s_mov_b32 s79, 0x20000")
    p("s_mov_b32 s58, %d" % SPIN_MAX)
    if opts.get("bar0", 0):
        p("s_barrier")
    stamp_init(p, opts)
    stamp(p, opts)
    if opts.get("stamp"):
        p("s_getreg_b32 s60, hwreg(HW_REG_XCC_ID)")
        p("v_writelane_b32 v254, s60, 60")
    p("s_cmp_ge_u32 s14, 4")
    p("s_cbranch_scc1 K1_LOADER")
    gen_compute(p, opts)
    p.label("K1_LOADER")
    p.reset_tracking()
    gen_loader(p, opts)
    p.label("K1_END")
    p("s_endpgm")


def gen_loader(p, opts):
    p.auto_wait = False
    p("s_sub_u32 s40, s14, 4")
    p("s_lshl_b32 s41, s40, 12")
    p("s_mov_b32 s45, 0")
    p("s_mov_b32 s48, 0")
    p("s_lshl_b32 s42, s15, 18")
    p("s_add_u32 s20, s4, s42")
    p("s_addc_u32 s21, s5, 0")
    p("s_mov_b32 s22, 0x40000")
    p("s_mov_b32 s23, 0x20000")
    p("s_lshl_b32 s42, s16, 8")
    p("s_add_u32 s24, s10, s42")
    p("s_addc_u32 s25, s11, 0")
    p("s_sub_u32 s26, 0x800000, s42")
    p("s_mov_b32 s27, 0x20000")
    p("v_lshrrev_b32 v1, 4, v0")
    p("v_and_b32 v2, 15, v0")
    p("v_lshrrev_b32 v3, 3, v0")
    p("v_and_b32 v4, 7, v0")
    p("v_lshlrev_b32 v5, 2, v1")
    p("v_xor_b32 v5, v5, v2")
    p("v_lshlrev_b32 v6, 4, v5")
    p("s_lshl_b32 s42, s40, 5")
    for ii in range(4):
        p("v_add_u32 v5, %d, v1" % (4 * (ii & 1)))
        p("v_xor_b32 v5, v5, v4")
        p("v_lshlrev_b32 v5, 4, v5")
        p("v_add_u32 v7, s42, v3")
        p("v_add_u32 v7, %d, v7" % (8 * ii))
        p("v_lshl_add_u32 v5, v7, 11, v5")
        if ii:
            p("v_subrev_u32 v%d, %d, v5" % (20 + ii, ii * 1024))
        else:
            p("v_mov_b32 v20, v5")
    p("s_lshl_b32 s42, s40, 4")
    for ii in range(4):
        p("v_add_u32 v5, s42, v1")
        p("v_add_u32 v5, %d, v5" % (4 * ii))
        p("v_xor_b32 v8, %d, v6" % (32 * ((ii >> 1) & 1)))
        p("v_lshl_add_u32 v7, v5, 13, v8")
        p("v_lshl_add_u32 v5, v5, 11, v8")
        p("v_subrev_u32 v%d, %d, v7" % (16 + ii, ii * 1024))
        p("v_subrev_u32 v%d, %d, v5" % (24 + ii, ii * 1024))
    p("s_lshl_b32 s52, s19, 1")
    p("s_and_b32 s53, s15, 3")
    p("s_lshl_b32 s53, s53, 2")
    p("s_add_u32 s52, s52, s53")
    rot = opts.get("rot", 1)
    if opts.get("ab", 0):
        p("s_lshl_b32 s52, s19, 1")
        p("s_and_b32 s53, s15, 1")
        p("s_lshl_b32 s53, s53, 3")
        p("s_add_u32 s52, s52, s53")
    if rot == 0:
        p("s_mov_b32 s52, 0")
    elif rot == 2:
        p("s_and_b32 s52, s19, 3")
        p("s_and_b32 s53, s15, 3")
        p("s_add_u32 s52, s52, s53")
    elif rot == 3:
        p("s_lshr_b32 s52, s19, 1")
        p("s_and_b32 s53, s15, 1")
        p("s_lshl_b32 s53, s53, 2")
        p("s_add_u32 s52, s52, s53")
    p("v_mov_b32 v9, %d" % MISC)
    p("s_lshl_b32 s42, s40, 2")
    p("v_add_u32 v8, s42, v9")

    def dma(v0r, single, srd, pol):
        for ii in range(4):
            p("buffer_load_dwordx4 v%d, %s, s43 offen offset:%d%s lds" % (v0r if single else v0r + ii, srd, ii * 1024, pol))

    def q_issue(nreg, px="", pw=""):
        p("s_and_b32 s47, %s, 3" % nreg)
        p("s_lshl_b32 s47, s47, 14")
        p("s_add_u32 s47, s47, s41")
        p("s_add_u32 s44, s52, %s" % nreg)
        p("s_and_b32 s44, s44, 15")
        p("s_mov_b32 m0, s47")
        p("s_lshl_b32 s43, s44, 7")
        dma(20, False, "s[20:23]", px)
        p("s_add_u32 m0, s47, %d" % VBASE)
        p("s_lshl_b32 s43, s44, 19")
        dma(16, False, "s[24:27]", pw)

    AB = opts.get("ab", 0)
    NR = opts.get("nr", 14)
    stream = [("K", 0)]
    for i in range(16):
        if i < 15:
            stream.append(("K", i + 1))
        stream.append(("V", i))

    def reg_load(t):
        kind, j = stream[t]
        r0 = 32 + 16 * (t % NR)
        p("s_mov_b32 s43, %d" % (j * 16384))
        for ii in range(4):
            v, srd = (10 + ii, "s[28:31]") if kind == "K" else (14, "s[32:35]")
            p("buffer_load_dwordx4 %s, v%d, %s, s43 offen offset:%d nt" % (vr(r0 + 4 * ii, 4), v, srd, ii * 1024))

    def reg_store(t):
        kind, j = stream[t]
        r0 = 32 + 16 * (t % NR)
        a = 15 if kind == "K" else 3
        for ii in range(4):
            p("ds_write_b128 v%d, %s offset:%d" % (a, vr(r0 + 4 * ii, 4), (j % 4) * SLOT + ii * 1024))

    p("s_lshl_b32 s42, s17, 18")
    p("s_add_u32 s28, s6, s42")
    p("s_addc_u32 s29, s7, 0")
    p("s_mov_b32 s30, 0x40000")
    p("s_mov_b32 s31, 0x20000")
    p("s_add_u32 s32, s8, s42")
    p("s_addc_u32 s33, s9, 0")
    p("s_mov_b32 s34, 0x40000")
    p("s_mov_b32 s35, 0x20000")
    for ii in range(4):
        p("v_add_u32 v5, %d, v1" % (4 * ii))
        p("v_xor_b32 v5, v5, v2")
        p("v_lshlrev_b32 v5, 4, v5")
        p("v_lshl_add_u32 v5, v1, 8, v5")
        p("v_add_u32 v%d, s41, v5" % (10 + ii))
    p("v_lshl_add_u32 v5, v1, 8, v6")
    p("v_add_u32 v14, s41, v5")
    p("v_lshlrev_b32 v5, 4, v0")
    p("v_add_u32 v15, s41, v5")
    p("s_lshl_b32 s42, s18, 21")
    p("s_lshl_b32 s43, s19, 8")
    p("s_add_u32 s42, s42, s43")
    p("s_add_u32 s80, s68, s42")
    p("s_addc_u32 s81, s69, 0")
    p("s_sub_u32 s82, 0x800000, s42")
    p("s_mov_b32 s83, 0x20000")
    p("s_lshl_b32 s54, s19, 1")
    p("s_lshl_b32 s55, s18, 3")
    p("s_lshl_b32 s42, s15, 5")
    p("s_add_u32 s55, s55, s42")
    p("s_lshl_b32 s55, s55, 15")
    p("v_add_u32 v3, %d, v15" % VBASE)
    if AB:
        p("s_bitcmp1_b32 s15, 1")
        p("s_cbranch_scc0 A_START")
        if opts.get("bwpf", 0):
            for n in range(4):
                p("s_add_u32 s44, s52, %d" % n)
                p("s_and_b32 s44, s44, 15")
                p("s_lshl_b32 s43, s44, 19")
                for ii in range(4):
                    p("buffer_load_dwordx4 %s, v%d, s[24:27], s43 offen offset:%d" % (vr(32 + 16 * n + 4 * ii, 4), 16 + ii, ii * 1024))
            p("s_waitcnt vmcnt(4)")
        for t in range(NR):
            reg_load(t)
        p("s_waitcnt vmcnt(%d)" % opts.get("bwait", 8))
        p.label("A_START")
    START = opts.get("start", 2)

    def qi(n):
        p("s_mov_b32 s50, %d" % n)
        m = opts.get("qnt", 0)
        q_issue("s50", " nt" if (m & 1 and n < 2) else "", " nt" if (m & 2 and n < 4) else "")

    def pf(kind, sreg, r0):
        p("s_lshl_b32 s43, %s, %d" % (sreg, 7 if kind == "X" else 19))
        for ii in range(4):
            v, srd = (20 + ii, "s[20:23]") if kind == "X" else (16 + ii, "s[24:27]")
            p("buffer_load_dwordx4 %s, v%d, %s, s43 offen offset:%d" % (vr(r0 + 4 * ii, 4), v, srd, ii * 1024))

    if START == 0:
        for n in range(4):
            qi(n)
        p("s_waitcnt vmcnt(24)")
        p("s_barrier")
        p("s_mov_b32 s50, 4")
    elif START == 2:
        qi(0); qi(1)
        p("s_waitcnt vmcnt(8)")
        p("s_barrier")
        qi(2)
        p("s_waitcnt vmcnt(8)")
        p("s_barrier")
        qi(3); qi(4)
        p("s_mov_b32 s50, 5")
    else:
        p("s_mov_b32 s52, 0")
        p("s_and_b32 s53, s15, 3")
        qi(0); qi(1)
        p("s_waitcnt vmcnt(8)")
        p("s_barrier")
        qi(2)
        p("s_waitcnt vmcnt(8)")
        p("s_barrier")
        qi(3)
        p("s_add_u32 s46, s53, 4")
        pf("W", "s46", 232)
        p("s_add_u32 s46, s19, 4")
        pf("X", "s46", 232)
        p("s_waitcnt vmcnt(16)")
        p("s_barrier")
        p("s_add_u32 s46, s53, 8")
        pf("W", "s46", 232)
        p("s_waitcnt vmcnt(12)")
        p("s_barrier")
        p("s_and_b32 s46, s19, 3")
        p("s_add_u32 s46, s46, 12")
        pf("X", "s46", 232)
        p("s_add_u32 s46, s53, 12")
        pf("W", "s46", 232)
        qi(4); qi(5); qi(6)
        p("s_mov_b32 s50, 7")
    if opts.get("burst", 0) == 3:
        p("s_lshr_b32 s95, s2, 3")
        p("s_add_u32 s95, s95, s2")
        p("s_and_b32 s95, s95, %d" % opts.get("bmask", 7))
        p("s_add_u32 s95, s95, %d" % opts.get("burst0", 8))
        p("s_and_b32 s56, s15, 3")
        p("s_lshl_b32 s56, s56, 2")
    p.label("LA")
    p("s_waitcnt vmcnt(16)")
    p("s_barrier")
    q_issue("s50")
    if opts.get("burst", 0) == 3:
        p("s_cmp_lg_u32 s95, s50")
        p("s_cbranch_scc1 NOEB")
        for n in range(4):
            p("s_add_u32 s43, s56, %d" % n)
            p("s_lshl_b32 s43, s43, 17")
            for ii in range(4):
                p("buffer_load_dwordx4 %s, v%d, s[80:83], s43 offen offset:%d" % (vr(32 + 16 * n + 4 * ii, 4), 24 + ii, ii * 1024))
        p.label("NOEB")
    p("s_add_u32 s50, s50, 1")
    p("s_cmp_lt_u32 s50, 16")
    p("s_cbranch_scc1 LA")
    stamp(p, opts)

    KVP = {0: "", 1: " nt", 2: " sc1", 3: " sc1 nt", 4: " sc0 sc1 nt"}[opts.get("kvp", 1)]
    VP = {0: "", 1: " nt"}[opts.get("vp", opts.get("kvp", 1) & 1)]
    KR = opts.get("kvrot", 0)
    if KR == 1:
        p("s_mul_i32 s96, s17, 5")
    elif KR == 2:
        p("s_lshr_b32 s96, s2, 3")
        p("s_add_u32 s96, s96, s2")
    elif KR == 3:
        p("s_lshl_b32 s96, s18, 2")
        p("s_add_u32 s96, s96, s15")

    def kvoff(j):
        if KR:
            p("s_add_u32 s43, s96, %d" % j)
            p("s_and_b32 s43, s43, 15")
            p("s_lshl_b32 s43, s43, 14")
        else:
            p("s_mov_b32 s43, %d" % (j * 16384))

    def k_issue(j):
        if isinstance(j, int):
            p("s_add_u32 m0, s41, %d" % (KBASE + (j % 4) * SLOT))
            kvoff(j)
        dma(10, False, "s[28:31]", KVP)

    def v_issue(j):
        if isinstance(j, int):
            p("s_add_u32 m0, s41, %d" % (VBASE + (j % 4) * SLOT))
            kvoff(j)
        dma(14, True, "s[32:35]", VP)

    if AB:
        p("s_bitcmp1_b32 s15, 1")
        p("s_cbranch_scc1 B_KV")
    def z_issue(t):
        p("s_add_u32 m0, s41, %d" % (VBASE + (t % 4) * SLOT))
        p("s_add_u32 s43, s54, %d" % t)
        p("s_and_b32 s43, s43, 15")
        p("s_lshl_b32 s43, s43, 17")
        dma(24, False, "s[80:83]", " nt" if (opts.get("znt") and t < 4) else "")

    def o_issue(t):
        p("s_add_u32 m0, s41, %d" % (KBASE + (t % 4) * SLOT))
        p("s_add_u32 s43, s54, %d" % t)
        p("s_and_b32 s43, s43, 15")
        p("s_lshl_b32 s43, s43, 14")
        p("s_add_u32 s43, s43, s55")
        dma(15, True, "s[36:39]", " sc1")

    def zpf(n, rb=None):
        p("s_add_u32 s43, s56, %d" % n)
        p("s_and_b32 s43, s43, 15")
        p("s_lshl_b32 s43, s43, 17")
        for ii in range(4):
            p("buffer_load_dwordx4 %s, v%d, s[80:83], s43 offen offset:%d%s" % (vr((32 + 16 * n if rb is None else rb) + 4 * ii, 4), 24 + ii, ii * 1024, " nt" if opts.get("znt") else ""))

    p("s_and_b32 s56, s15, 3")
    p("s_lshl_b32 s56, s56, 2")
    p("s_add_u32 s56, s56, s54")
    p("s_add_u32 s56, s56, 2")
    p("v_mov_b32 v7, 0")
    p("s_cmp_lg_u32 s2, 0")
    p("s_cbranch_scc1 NONONCE")
    p("s_cmp_lg_u32 s14, 7")
    p("s_cbranch_scc1 NONONCE")
    p("s_memrealtime s[46:47]")
    p("s_waitcnt lgkmcnt(0)")
    p("s_or_b32 s46, s46, 1")
    p("v_mov_b32 v4, s46")
    p("v_mov_b32 v5, s47")
    p("v_mov_b32 v7, 0")
    p("s_mov_b64 exec, 1")
    p("buffer_store_dwordx2 v[4:5], v7, s[76:79], 0 offen sc1")
    p("s_mov_b64 exec, -1")
    p("s_waitcnt vmcnt(0)")
    p.label("NONONCE")
    W = opts.get("kvw", 12)
    SPF = opts.get("spf", 0)
    BURST = opts.get("burst", 0)
    p("s_lshr_b32 s95, s2, 3")
    p("s_add_u32 s95, s95, s2")
    p("s_and_b32 s95, s95, 7")
    p("s_add_u32 s95, s95, %d" % opts.get("burst0", 18))
    p("s_and_b32 s57, s15, 3")
    p("s_lshl_b32 s57, s57, 2")
    p("s_add_u32 s57, s57, s54")
    groups = []
    for t, (kind, j) in enumerate(stream):
        if kind == "K":
            groups.append((("K", j), (lambda j=j: k_issue(j)), 13 + j, 4))
        else:
            if SPF:
                def vpf(j=j):
                    v_issue(j)
                    for q in range(j * SPF, min(16, (j + 1) * SPF)):
                        p("s_add_u32 s43, s57, %d" % (q // 4))
                        p("s_and_b32 s43, s43, 15")
                        p("s_lshl_b32 s43, s43, 17")
                        p("buffer_load_dwordx4 %s, v%d, s[80:83], s43 offen offset:%d" % (vr(32 + 4 * q, 4), 24 + q % 4, (q % 4) * 1024))
                npf = max(0, min(16, (j + 1) * SPF) - j * SPF)
                groups.append((("V", j), vpf, (13 + j) if j < 4 else (14 + j), 4 + npf))
            else:
                groups.append((("V", j), (lambda j=j: v_issue(j)), (13 + j) if j < 4 else (14 + j), 4))
    def nonce_load():
        p("buffer_load_dwordx2 v[28:29], v7, s[76:79], 0 offen sc1")
        if not SPF and not BURST:
            zpf(0)
    groups.append((("pf", 0), nonce_load, 0, 1 if (SPF or BURST) else 5))
    groups.append((("Z", 0), (lambda: z_issue(0)), 30, 4))
    if not SPF and not BURST:
        groups.append((("pf", 1), (lambda: zpf(1)), 0, 4))
    groups.append((("Z", 1), (lambda: z_issue(1)), 31, 4))
    if not SPF and not BURST:
        groups.append((("pf", 2), (lambda: zpf(2)), 0, 4))
        groups.append((("pf", 3), (lambda: zpf(3)), 0, 4))
    out = [("Q", 13)] * 8 + [("Q", 14)] * 8 + [("Q", 15)] * 8
    gi = [0]

    def wait_until(pred):
        last = -1
        for i, e in enumerate(out):
            if pred(e):
                last = i
        if last >= 0:
            n = len(out) - 1 - last
            p("s_waitcnt vmcnt(%d)" % n)
            del out[:last + 1]

    def issue_next(throttle=True):
        name, emit, fr, nl = groups[gi[0]]
        if throttle and len(out) > W - 4:
            p("s_waitcnt vmcnt(%d)" % (W - 4))
            del out[:len(out) - (W - 4)]
        emit()
        out.extend([name] * nl)
        gi[0] += 1

    for n in range(13, 33):
        need = [("Q", n)] if n < 16 else ([("K", 0)] if n == 16 else ([("K", n - 16), ("V", n - 17)] if n < 32 else [("V", 15)]))
        names = [x[0] for x in groups]
        lastneed = max([names.index(x) for x in need if x in names] + [-1])
        while gi[0] < len(groups) and gi[0] <= lastneed + W // 4 and groups[gi[0]][2] <= n - 1:
            issue_next(throttle=(n > 16))
        wait_until(lambda e: e in need)
        p("s_barrier")
        if BURST == 1 and opts.get("burst0", 18) <= n < opts.get("burst0", 18) + 8:
            p("s_cmp_lg_u32 s95, %d" % n)
            p("s_cbranch_scc1 NOBURST_%d" % n)
            for q in range(4):
                zpf(q)
            p.label("NOBURST_%d" % n)
        if n == 28:
            stamp(p, opts)
    while gi[0] < len(groups):
        issue_next(throttle=False)
    p.label("JOIN")
    p("s_lshl_b32 s42, s15, 2")
    p("s_add_u32 s42, s42, s18")
    p("s_lshl_b32 s42, s42, 7")
    p("s_add_u32 s42, s42, 0x%x" % FLAG_OFF)
    p("v_and_b32 v5, 7, v0")
    p("v_lshlrev_b32 v5, 3, v5")
    p("s_lshl_b32 s92, 1, s19")
    p("s_waitcnt vmcnt(0)")
    p.label("NONCE_CHK")
    p("v_cmp_eq_u32 vcc, 0, v28")
    p("s_cbranch_vccz NONCE_OK")
    p("s_sleep 8")
    p("buffer_load_dwordx2 v[28:29], v7, s[76:79], 0 offen sc1")
    p("s_waitcnt vmcnt(0)")
    p("s_sub_u32 s58, s58, 1")
    p("s_cmp_gt_i32 s58, 0")
    p("s_cbranch_scc1 NONCE_CHK")
    p.label("NONCE_OK")
    p("s_mov_b64 exec, 1")
    p("ds_write_b64 v9, v[28:29] offset:%d" % F_NONCE)
    p("s_mov_b64 exec, -1")

    p("s_mov_b32 s94, 0")
    p("v_mov_b32 v100, 0")
    p("v_mov_b32 v101, 0")

    def decide(seq, blocking, tag, keep):
        p("s_lshl_b32 s47, %s, 2" % seq)
        p("v_add_u32 v6, s47, v9")
        p("s_cmp_lg_u32 s14, 4")
        p("s_cbranch_scc1 DR_%s" % tag)
        if keep:
            p("s_waitcnt vmcnt(8)")
            p("v_cmp_eq_u64 vcc, v[100:101], v[28:29]")
            p("s_and_b32 s46, vcc_lo, 0xff")
            p("s_or_b32 s94, s94, s46")
        p("s_andn2_b32 s46, s94, s92")
        p("s_cbranch_scc1 DH_%s" % tag)
        p.label("DP_%s" % tag)
        p("buffer_load_dwordx2 v[30:31], v5, s[36:39], s42 offen sc1")
        p("s_waitcnt vmcnt(0)")
        p("v_cmp_eq_u64 vcc, v[30:31], v[28:29]")
        p("s_and_b32 s94, vcc_lo, 0xff")
        p("s_andn2_b32 s46, s94, s92")
        p("s_cbranch_scc1 DH_%s" % tag)
        if blocking:
            p("s_sleep %d" % opts.get("psleep", 1))
            p("s_sub_u32 s58, s58, 1")
            p("s_cmp_gt_i32 s58, 0")
            p("s_cbranch_scc1 DP_%s" % tag)
            p("s_andn2_b32 s46, 0xff, s92")
        else:
            p("s_mov_b32 s93, 15")
            p("s_branch DW_%s" % tag)
        p.label("DH_%s" % tag)
        p("s_lshl_b32 s47, s46, 8")
        p("s_or_b32 s47, s47, s46")
        p("s_lshr_b32 s47, s47, s19")
        p("s_ff1_i32_b32 s47, s47")
        p("s_add_u32 s47, s47, s19")
        p("s_and_b32 s93, s47, 7")
        p.label("DW_%s" % tag)
        p("s_add_u32 s47, s93, 1")
        p("v_mov_b32 v4, s47")
        p("s_mov_b64 exec, 1")
        p("ds_write_b32 v6, v4 offset:%d" % F_MB)
        p("s_mov_b64 exec, -1")
        p("s_branch DD_%s" % tag)
        p.label("DR_%s" % tag)
        p("ds_read_b32 v4, v6 offset:%d" % F_MB)
        p("s_waitcnt lgkmcnt(0)")
        p("v_readfirstlane_b32 s47, v4")
        p("s_sub_u32 s93, s47, 1")
        p("s_and_b32 s93, s93, 15")
        p("s_sub_u32 s58, s58, 1")
        p("s_cmp_lt_i32 s58, 1")
        p("s_cbranch_scc1 DD_%s" % tag)
        p("s_cmp_eq_u32 s47, 0")
        p("s_cbranch_scc1 DR_%s" % tag)
        p.label("DD_%s" % tag)

    def mark():
        p("s_lshl_b32 s47, 1, s93")
        p("s_or_b32 s92, s92, s47")

    def tile_issue(slot, half):
        p("s_lshl_b32 s44, s93, 1")
        p("s_add_u32 s44, s44, %s" % half)
        if isinstance(slot, int):
            p("s_add_u32 s47, s41, %d" % (slot * SLOT))
        else:
            p("s_add_u32 s47, s41, %s" % slot)
        p("s_mov_b32 m0, s47")
        p("s_lshl_b32 s43, s44, 14")
        p("s_add_u32 s43, s43, s55")
        dma(15, True, "s[36:39]", " sc1")
        p("s_add_u32 m0, s47, %d" % VBASE)
        p("s_lshl_b32 s43, s44, 17")
        dma(24, False, "s[80:83]", "")

    decide(1, False, "E", 0)
    p("s_cmp_eq_u32 s93, 15")
    p("s_cbranch_scc1 NOT_EARLY")
    mark()
    tile_issue(2, 0)
    p.label("NOT_EARLY")
    p("s_waitcnt lgkmcnt(0)")
    stamp(p, opts)
    p("s_barrier")
    p("s_cmp_eq_u32 s93, 15")
    p("s_cbranch_scc1 NOT_EARLY2")
    p("buffer_load_dwordx2 v[100:101], v5, s[36:39], s42 offen sc1")
    tile_issue(3, 1)
    p.label("NOT_EARLY2")
    p("s_barrier")
    p("s_cmp_lg_u32 s93, 15")
    p("s_cbranch_scc1 LATE_SKIP")
    decide(2, True, "L", 0)
    mark()
    tile_issue(2, 0)
    tile_issue(3, 1)
    p.label("LATE_SKIP")
    stamp(p, opts)
    p("s_mov_b32 s50, 4")
    p("s_branch LC_IN")
    p.label("LC")
    p("s_waitcnt vmcnt(16)")
    p("s_barrier")
    p.label("LC_IN")
    p("s_bitcmp1_b32 s50, 0")
    p("s_cbranch_scc1 LC_ODD")
    decide("s50", True, "C", 1)
    mark()
    p("s_branch LC_ISSUE")
    p.label("LC_ODD")
    p("s_cmp_lg_u32 s14, 4")
    p("s_cbranch_scc1 LC_ISSUE")
    p("buffer_load_dwordx2 v[100:101], v5, s[36:39], s42 offen sc1")
    p.label("LC_ISSUE")
    p("s_and_b32 s48, s50, 3")
    p("s_lshl_b32 s48, s48, 14")
    p("s_and_b32 s49, s50, 1")
    tile_issue("s48", "s49")
    p("s_add_u32 s50, s50, 1")
    p("s_cmp_lt_u32 s50, 16")
    p("s_cbranch_scc1 LC")
    p("s_waitcnt vmcnt(16)")
    p("s_barrier")
    p("s_waitcnt vmcnt(8)")
    p("s_barrier")
    p("s_waitcnt vmcnt(0)")
    p("s_barrier")
    stamp(p, opts)
    if opts.get("pwf", 0):
        p("s_branch LDONE")
    p("s_cmp_lg_u32 s14, 4")
    p("s_cbranch_scc1 LDONE")
    p("s_barrier")
    p("s_lshl_b32 s42, s15, 3")
    p("s_add_u32 s42, s42, s19")
    p("s_lshl_b32 s42, s42, 7")
    p("s_add_u32 s42, s42, 0x%x" % (FLAG_OFF + 8192))
    p("s_lshl_b32 s43, s18, 3")
    p("s_add_u32 s43, s43, s42")
    p("v_and_b32 v5, 3, v0")
    p("v_lshlrev_b32 v5, 3, v5")
    p("s_barrier")
    p("s_mov_b64 exec, 1")
    p("buffer_store_dwordx2 v[28:29], v7, s[36:39], s43 offen sc1")
    p("s_mov_b64 exec, -1")
    p.label("POLL2")
    p("buffer_load_dwordx2 v[30:31], v5, s[36:39], s42 offen sc1")
    p("s_waitcnt vmcnt(0)")
    p("v_cmp_ne_u64 vcc, v[30:31], v[28:29]")
    p("s_cbranch_vccz POLL2_OK")
    p("s_sleep %d" % opts.get("psleep", 1))
    p("s_sub_u32 s58, s58, 1")
    p("s_cmp_gt_i32 s58, 0")
    p("s_cbranch_scc1 POLL2")
    p.label("POLL2_OK")
    p("s_barrier")
    p.label("LDONE")
    stamp(p, opts)
    stamp_flush(p, opts, 5)
    if AB:
        p("s_branch K1_END")
        p.label("B_KV")
        p("s_and_b32 s56, s15, 3")
        p("s_lshl_b32 s56, s56, 2")
        p("s_add_u32 s56, s56, s54")
        p("s_add_u32 s56, s56, 2")
        p("v_mov_b32 v7, 0")
        p("s_waitcnt vmcnt(16)")
        p("s_barrier")
        p("s_waitcnt vmcnt(8)")
        p("s_barrier")
        p("s_waitcnt vmcnt(0)")
        p("s_barrier")
        p.reset_tracking()
        p.auto_wait = True
        nxt = NR
        for n in range(16, 33):
            ts = [0] if n == 16 else ([2 * (n - 17) + 1, 2 * (n - 17) + 2] if n < 32 else [31])
            for t in ts:
                assert t < nxt, (t, nxt, n)
                reg_store(t)
            p("s_waitcnt lgkmcnt(0)")
            p("s_barrier")
            stored = max(ts)
            last_n = opts.get("blast", 29)
            target = NR + int(math.ceil((32 - NR) * (n - 15) / float(last_n - 15)))
            while nxt < 32 and nxt < target and nxt - NR <= stored:
                reg_load(nxt)
                nxt += 1
            if n == 28:
                stamp(p, opts)
            if n == 29:
                p("buffer_load_dwordx2 v[28:29], v7, s[76:79], 0 offen sc1")
                zpf(0, 232)
            if n == 30:
                z_issue(0); zpf(1, 232)
            if n == 31:
                z_issue(1); zpf(2, 232)
            if n == 32:
                zpf(3, 232)
        assert nxt == 32
        p.auto_wait = False
        p("s_branch JOIN")
    p.auto_wait = True


def gen_compute(p, opts):
    O = 0
    Q = 64
    S = [96, 128]
    NEGM = 160
    KF = 176
    NKF = opts.get("nkf", 6)
    KFR = [176 + 4 * i for i in range(6)] + [244]
    L2 = 249
    VF = 200
    KA = 232
    VA = 240
    T0, T1, T2, T3 = 244, 245, 246, 247
    L, CNT, FA, CPA, X1, X2 = 248, 249, 250, 251, 252, 253
    XB = [64, 80]
    WB = [96, 160]
    XA, WA = 224, 226
    TA, TB, TC, TD = 236, 237, 238, 239
    THR = opts.get("thr", 8.0)

    def lane_to(r):
        p("v_mbcnt_lo_u32_b32 v%d, -1, 0" % r)
        p("v_mbcnt_hi_u32_b32 v%d, -1, v%d" % (r, r))

    def lane_parts():
        lane = "v%d" % X1
        p("v_and_b32 v%d, 31, %s" % (TA, lane))
        p("v_lshrrev_b32 v%d, 5, %s" % (TB, lane))
        p("v_bfe_u32 v%d, %s, 2, 2" % (TC, lane))
        p("v_bfe_u32 v%d, %s, 4, 1" % (T1, lane))
        p("v_and_b32 v%d, 3, %s" % (T2, lane))
        p("v_lshlrev_b32 v%d, 3, v%d" % (T2, T2))
        p("v_lshl_add_u32 v%d, v%d, 5, v%d" % (TD, T1, T2))

    def wa_setup():
        lane = "v%d" % X1
        p("v_lshrrev_b32 v%d, 4, %s" % (T0, lane))
        p("v_lshl_add_u32 v%d, v%d, 3, v%d" % (T1, T0, TC))
        p("v_and_b32 v%d, 3, %s" % (T2, lane))
        p("v_lshlrev_b32 v%d, 3, v%d" % (T2, T2))
        p("v_lshl_add_u32 v%d, v%d, 8, v%d" % (T1, T1, T2))
        p("v_add_u32 v%d, %d, v%d" % (T1, VBASE, T1))
        p("v_and_b32 v%d, 1, v%d" % (T2, T0))
        p("v_lshl_add_u32 v%d, v%d, 1, v%d" % (T2, TC, T2))
        for a in range(8):
            p("v_xor_b32 v%d, %d, v%d" % (T3, a, T2))
            p("v_lshl_add_u32 v%d, v%d, 5, v%d" % (WA + a, T3, T1))
        p("v_and_b32 v%d, 15, %s" % (T1, lane))
        p("s_lshl_b32 s40, s14, 5")
        p("v_add_u32 v%d, s40, v%d" % (T1, T1))
        p("v_bfe_u32 v%d, v%d, 1, 3" % (T2, T1))
        for t in range(2):
            p("v_add_u32 v%d, %d, v%d" % (T3, 4 * t, T0))
            p("v_xor_b32 v%d, v%d, v%d" % (T3, T3, T2))
            p("v_lshlrev_b32 v%d, 4, v%d" % (T3, T3))
            p("v_lshl_add_u32 v%d, v%d, 7, v%d" % (XA + t, T1, T3))

    if opts.get("cpf", 1):
        p.raw("    s_getpc_b64 s[60:61]")
        p.label("PCL")
        p.raw("    s_sub_u32 s60, s60, PCL-%s_kernel" % NAME)
        p.raw("    s_subb_u32 s61, s61, 0")
        p("s_mov_b32 s64, s60")
        p("s_mov_b32 s65, s61")
        p.raw("    s_mov_b32 s66, K1_END-%s_kernel" % NAME)
        p("s_mov_b32 s67, 0x20000")
        p("s_lshr_b32 s62, s2, 3")
        p("s_and_b32 s62, s62, 7")
        p("s_lshl_b32 s62, s62, 2")
        p("s_add_u32 s62, s62, s14")
        p("s_lshl_b32 s62, s62, 10")
        p("v_lshlrev_b32 v%d, 4, v0" % T0)
        p("buffer_load_dwordx4 v[100:103], v%d, s[64:67], s62 offen" % T0)
        p.vm = []
    p("v_mov_b32 v%d, v0" % X1)
    p("v_mov_b32 v%d, %d" % (FA, MISC))
    p("s_lshl_b32 s40, s14, 2")
    p("v_add_u32 v%d, s40, v%d" % (CPA, FA))
    p("v_mov_b32 v%d, 0" % CNT)
    lane_parts()
    wa_setup()

    spins = []

    def flag_read():
        return Inst("ds_read_b128 %s, v%d offset:%d" % (vr(T0, 4), FA, F_LP))

    def flag_check(need):
        u = uid()
        p("v_min_u32 v%d, v%d, v%d" % (T0, T0, T1))
        p("v_min3_u32 v%d, v%d, v%d, v%d" % (T0, T0, T2, T3))
        p("v_readfirstlane_b32 s53, v%d" % T0)
        p("s_cmp_ge_u32 s53, %s" % need)
        p("s_cbranch_scc0 SPIN_%d" % u)
        p.label("SPUN_%d" % u)
        spins.append((u, need))

    def done_step(inc="1"):
        p.need([("rd",)])
        p("v_add_u32 v%d, %s, v%d" % (CNT, inc, CNT))
        p("s_mov_b64 exec, 1")
        p("ds_write_b32 v%d, v%d offset:%d" % (CPA, CNT, F_CP))
        p("s_mov_b64 exec, -1")

    def tag_last(rds):
        rds[-1].tokens_out.append(("rd",))

    def gemm_mfmas(s):
        xb, wb = XB[s % 2], WB[s % 2]
        m = []
        for t in range(2):
            for a in range(8):
                for b in range(2):
                    acc = vr(O + 4 * (2 * a + b), 4)
                    m.append(Inst("v_mfma_f32_16x16x32_bf16 %s, %s, %s, %s" % (acc, vr(wb + (t * 8 + a) * 4, 4), vr(xb + (t * 2 + b) * 4, 4), acc)))
        return m

    def g_reads(s):
        off = (s % 4) * SLOT
        xb, wb = XB[s % 2], WB[s % 2]
        r = []
        for t in range(2):
            for b in range(2):
                r.append(Inst("ds_read_b128 %s, v%d offset:%d" % (vr(xb + (t * 2 + b) * 4, 4), XA + t, off + b * 2048)))
            for a in range(8):
                for u in range(2):
                    r.append(Inst("ds_read_b64_tr_b16 %s, v%d offset:%d" % (vr(wb + (t * 8 + a) * 4 + 2 * u, 2), WA + a, off + (32 * t + 4 * u) * 256)))
        return r

    p("s_mov_b32 s88, 0")
    p("s_mov_b32 s90, 0")
    if opts.get("cpf", 1):
        p("s_waitcnt vmcnt(0)")
    p.label("GEMM")
    p.lgkm = []
    for k in range(64):
        p("v_mov_b32 v%d, 0" % (O + k))
    p("s_barrier")
    stamp(p, opts)
    for i in g_reads(0):
        p.add(i)
    p("s_waitcnt lgkmcnt(0)")
    p("s_mov_b32 s51, 4")
    p.label("GLOOP")
    stamp(p, opts)
    RG = opts.get("rgaps", 24)
    for s in range(1, 5):
        rd = g_reads(s)
        mm = gemm_mfmas(s - 1)
        n = len(rd)
        ri = 0
        pre = opts.get("gpre", 2)
        for k, m in enumerate(mm):
            if k == pre:
                p("s_barrier")
            p.add(m)
            if k >= pre:
                kk = k - pre
                hi = min(n, (n * (kk + 1) + RG - 1) // RG)
                for i in rd[ri:hi]:
                    p.add(i)
                ri = max(ri, hi)
        assert ri == n
        p("s_waitcnt lgkmcnt(0)")
        if s == 1:
            p("s_cmp_lg_u32 s90, 0")
            p("s_cbranch_scc1 SIG1")
            p.label("SIG1_BACK")
    p("s_sub_u32 s51, s51, 1")
    p("s_cmp_lg_u32 s51, 0")
    p("s_cbranch_scc1 GLOOP")
    p("s_cmp_lg_u32 s88, 0")
    p("s_cbranch_scc1 TAIL_CONT")
    stamp(p, opts)
    lane = "v%d" % X1
    p("v_and_b32 v%d, 15, %s" % (T1, lane))
    for t in range(8):
        p("v_add_u32 v%d, %d, v%d" % (T2, 2 * t, TB))
        p("v_xor_b32 v%d, v%d, v%d" % (T2, T2, T1))
        p("v_lshlrev_b32 v%d, 4, v%d" % (T2, T2))
        p("v_lshl_add_u32 v%d, v%d, 8, v%d" % (XA + t, TA, T2))
    p("v_lshl_add_u32 v%d, v%d, 2, v%d" % (T2, TB, TC))
    p("v_lshl_add_u32 v%d, v%d, 8, v%d" % (T2, T2, TD))
    for j in range(4):
        p("v_xor_b32 v%d, %d, v%d" % (T0, j, TC))
        p("v_lshl_add_u32 v%d, v%d, 6, v%d" % (T0, T0, T2))
        p("v_add_u32 v%d, %d, v%d" % (VA + j, VBASE, T0))
    for t in range(8):
        p("v_mov_b32 v%d, v%d" % (KA + t, XA + t))
    cval = (128 ** -0.5) * math.log2(math.e)
    p("s_mov_b32 s44, 0x%08x" % f32bits(cval))

    def k_reads(j):
        r = []
        for n in range(16):
            kb, t = n // 8, n % 8
            r.append(Inst("ds_read_b128 %s, v%d offset:%d" % (vr(KFR[n % NKF], 4), KA + t, (j % 4) * SLOT + kb * 8192)))
        return r

    kr0 = k_reads(0)
    tag_last(kr0)
    for i in kr0[:NKF]:
        p.add(i)
    for t in range(8):
        base = O + 8 * t
        for k in range(8):
            p("v_mul_f32 v%d, s44, v%d" % (base + k, base + k))
        for k in range(4):
            p("v_cvt_pk_bf16_f32 v%d, v%d, v%d" % (Q + 4 * t + k, base + 2 * k, base + 2 * k + 1))
    for t in range(8):
        p("v_permlane16_swap_b32 v%d, v%d" % (Q + 4 * t + 0, Q + 4 * t + 2))
        p("v_permlane16_swap_b32 v%d, v%d" % (Q + 4 * t + 1, Q + 4 * t + 3))

    def regs(a, n):
        return [("v", a + k) for k in range(n)]

    def qk_mfmas(sb, first=False):
        m = []
        for n in range(16):
            kb, t = n // 8, n % 8
            c = ("0" if first else vr(NEGM, 16)) if t == 0 else vr(sb + 16 * kb, 16)
            extra = regs(KFR[(n + 1) % NKF], 4) if (n % 2 == 0 and opts.get("pw", 1)) else []
            m.append(Inst("v_mfma_f32_32x32x16_bf16 %s, %s, %s, %s" % (vr(sb + 16 * kb, 16), vr(KFR[n % NKF], 4), vr(Q + 4 * t, 4), c), tokens_in=extra))
        return m

    def v_reads(i):
        r = []
        for n in range(16):
            ks, j = n // 4, n % 4
            for u in range(2):
                r.append(Inst("ds_read_b64_tr_b16 %s, v%d offset:%d" % (vr(VF + 4 * (n % 8) + 2 * u, 2), VA + j, (i % 4) * SLOT + (16 * ks + 8 * u) * 256)))
        return r

    def pv_mfmas(sb):
        m = []
        for n in range(16):
            ks, j = n // 4, n % 4
            extra = regs(VF + 4 * ((n + 1) % 8), 4) if n % 2 == 0 else []
            m.append(Inst("v_mfma_f32_32x32x16_bf16 %s, %s, %s, %s" % (vr(O + 16 * j, 16), vr(VF + 4 * (n % 8), 4), vr(sb + 8 * ks, 4), vr(O + 16 * j, 16)), tokens_in=extra))
        return m

    def exp_group(sb, g):
        b = sb + 8 * g
        ex = [Inst("v_exp_f32 v%d, v%d" % (b + k, b + k)) for k in range(8)]
        if opts.get("l2", 0):
            ad = [Inst("v_add_f32 v%d, v%d, v%d" % ((L, L, b + k) if k % 2 == 0 else (L2, L2, b + k))) for k in range(8)]
        else:
            ad = [Inst("v_add_f32 v%d, v%d, v%d" % (L, L, b + k)) for k in range(8)]
        cv = [Inst("v_cvt_pk_bf16_f32 v%d, v%d, v%d" % (b + k, b + 2 * k, b + 2 * k + 1)) for k in range(4)]
        r = ex + ad + cv
        o = []
        for k in range(8):
            o.append(ex[k])
            if k >= 1:
                o.append(ad[k - 1])
            if k >= 3 and k % 2 == 1:
                o.append(cv[(k - 3) // 2])
        o.append(ad[7])
        o.append(cv[3])
        check_order(r, o)
        return o

    def max_tree(sb):
        r = []
        r.append(Inst("v_max3_f32 v%d, v%d, v%d, v%d" % (X1, sb, sb + 1, sb + 2)))
        r.append(Inst("v_max3_f32 v%d, v%d, v%d, v%d" % (X2, sb + 16, sb + 17, sb + 18)))
        for k in range(3, 15, 2):
            r.append(Inst("v_max3_f32 v%d, v%d, v%d, v%d" % (X1, X1, sb + k, sb + k + 1)))
            r.append(Inst("v_max3_f32 v%d, v%d, v%d, v%d" % (X2, X2, sb + 16 + k, sb + 16 + k + 1)))
        r.append(Inst("v_max3_f32 v%d, v%d, v%d, v%d" % (X1, X1, sb + 15, sb + 31)))
        r.append(Inst("v_max_f32 v%d, v%d, v%d" % (X1, X1, X2)))
        return r

    mm = qk_mfmas(S[0], first=True)
    zero = [Inst("v_mov_b32 v%d, 0" % (O + k)) for k in range(64)] + [Inst("v_mov_b32 v%d, 0" % L), Inst("v_mov_b32 v%d, 0" % L2)]
    seq = []
    zi = 0
    for n in range(16):
        seq.append(mm[n])
        if n + NKF < 16:
            seq.append(kr0[n + NKF])
        seq += zero[zi:zi + 4]; zi += 4
    seq += zero[zi:]
    for i in seq:
        p.add(i)
    for i in max_tree(S[0]):
        p.add(i)
    p("v_mov_b32 v%d, v%d" % (X2, X1))
    p("v_permlane32_swap_b32 v%d, v%d" % (X1, X2))
    p("v_max_f32 v%d, v%d, v%d" % (X1, X1, X2))
    for k in range(16):
        p("v_sub_f32 v%d, 0, v%d" % (NEGM + k, X1))
    for k in range(32):
        p("v_sub_f32 v%d, v%d, v%d" % (S[0] + k, S[0] + k, X1))

    rare_blocks = []

    def iteration(i, tag, qk=True, head=True):
        par = i % 2
        sc, sn = S[par], S[1 - par]
        stamp(p, opts, 2)
        dpv = pv_mfmas(sn)[12:] if head else []
        mt = max_tree(sc) if head else []
        if head:
            p.add(dpv[0])
            for x in mt[:4]:
                p.add(x)
        p("s_waitcnt lgkmcnt(0)")
        p("s_barrier")
        stamp(p, opts, 2)
        kr = k_reads(i + 1) if qk else []
        if head:
            pre = kr[:NKF]
            seq = list(pre[:3])
            fill = pre[3:] + mt[4:]
            per = (len(fill) + 1) // 2
            for k, m in enumerate(dpv[1:]):
                seq.append(m)
                if k < 2:
                    seq += fill[k * per:(k + 1) * per]
            last = seq.pop()
            cmpi = Inst("v_cmp_lt_f32 vcc, 0x%08x, v%d" % (f32bits(THR), X1))
            seq += [cmpi, last]
            check_order(pre + dpv[1:] + mt[4:] + [cmpi], seq)
            for x in seq:
                p.add(x)
            p("s_cbranch_vccnz RARE_%s" % tag)
            p.label("BACK_%s" % tag)
            rare_blocks.append((tag, sc))
        else:
            for x in kr[:NKF]:
                p.add(x)
        vrd = v_reads(i)
        tag_last(vrd)
        pv = pv_mfmas(sc)
        e0, e1, e2, e3 = [exp_group(sc, g) for g in range(4)]
        out = []
        if qk:
            mm = qk_mfmas(sn)
            ref = []
            for n in range(16):
                if n % 2 == 0:
                    for q in (n, n + 1):
                        if q >= NKF:
                            ref.append(kr[q])
                ref.append(mm[n])
            h2 = opts.get("e2split", 8)
            seq_ref = e0 + e1 + e2[:h2] + ref
            fill = e0 + e1 + e2[:h2] + vrd[:16]
            ph1 = interleave(mm, fill, lead=opts.get("lead1", 16))
            res = []
            cnt = 0
            for x in ph1:
                res.append(x)
                if x.kind == "mfma":
                    if cnt + NKF < 16:
                        res.append(kr[cnt + NKF])
                    cnt += 1
            out += res
            rest_e2 = e2[h2:]
        else:
            seq_ref = e0 + e1
            out += vrd[:16] + e0 + e1
            rest_e2 = e2
        fr = []
        npv = 12 if qk else 16
        ref2 = list(rest_e2 + e3)
        for n in range(16):
            if n % 2 == 0:
                ref2 += vrd[2 * n:2 * n + 4]
            if n < npv:
                ref2.append(pv[n])
        seq_ref = seq_ref + ref2 + fr
        a = interleave(pv[:8], rest_e2 + e3[:len(e3) // 2], lead=0)
        bpart = interleave(pv[8:12], e3[len(e3) // 2:] + fr, lead=0)
        res = []
        cnt = 0
        for x in a + bpart:
            res.append(x)
            if x.kind == "mfma":
                if cnt + 8 < 16:
                    res.append(vrd[2 * (cnt + 8)]); res.append(vrd[2 * (cnt + 8) + 1])
                cnt += 1
        out += res
        cpart = pv[12:] if not qk else []
        check_order(seq_ref, out + cpart)
        for x in out + cpart:
            p.add(x)

    if opts.get("cprio"):
        p("s_setprio %d" % opts["cprio"])
    if opts.get("compact", 1):
        for k in range(4):
            p("v_mov_b32 v%d, 0" % (S[1] + 24 + k))
        for k in range(16):
            p("v_mov_b32 v%d, 0" % (VF + 16 + k))
        p("s_waitcnt lgkmcnt(0)")
        p("s_mov_b32 s51, 4")
        saved_items = len(p.items)
        nrb = len(rare_blocks)
        iteration(3, "DRY")
        st = [set(x) for x in p.lgkm]
        del p.items[saved_items:]
        del rare_blocks[nrb:]
        p.lgkm = st
        p.label("K1_LOOP")
        stamp(p, opts)
        for i in range(0, 4):
            iteration(i, "L%d" % i)
        assert opts.get("stamp") or st == p.lgkm
        p("s_sub_u32 s51, s51, 1")
        p("s_cmp_lg_u32 s51, 0")
        p("s_cbranch_scc1 K1_LOOP")
        for m in pv_mfmas(S[1])[12:]:
            p.add(m)
    else:
        iteration(0, "A0", head=False)
        iteration(1, "A1")
        iteration(2, "A2")
        p("s_mov_b32 s51, 3")
        p.label("K1_LOOP")
        entry_state = [set(x) for x in p.lgkm]
        stamp(p, opts)
        for i in range(3, 7):
            iteration(i, "L%d" % i)
        assert opts.get("stamp") or entry_state == p.lgkm, (entry_state, p.lgkm)
        p("s_sub_u32 s51, s51, 1")
        p("s_cmp_lg_u32 s51, 0")
        p("s_cbranch_scc1 K1_LOOP")
        iteration(15, "Z", qk=False)
    stamp(p, opts)
    AL = X2
    p("v_add_f32 v%d, v%d, v%d" % (L, L, L2))
    p("v_mov_b32 v%d, v%d" % (X1, L))
    p("v_permlane32_swap_b32 v%d, v%d" % (L, X1))
    p("v_add_f32 v%d, v%d, v%d" % (L, L, X1))
    p("v_rcp_f32 v%d, v%d" % (AL, L))
    LN = L
    lane_to(X1)
    p("v_lshlrev_b32 v%d, 4, v%d" % (LN, X1))
    p("s_lshl_b32 s43, s17, 15")
    p("s_lshl_b32 s41, s14, 12")
    p("s_add_u32 s43, s43, s41")
    p("s_add_u32 s42, s43, 16384")
    p("v_and_b32 v%d, 31, v%d" % (T0, X1))
    p("s_lshl_b32 s40, s14, 5")
    p("v_add_u32 v%d, s40, v%d" % (T0, T0))
    p("v_bfe_u32 v%d, v%d, 1, 3" % (T1, T0))
    p("v_lshrrev_b32 v%d, 5, v%d" % (T2, X1))
    for c in range(4):
        p("v_add_u32 v%d, %d, v%d" % (T3, 2 * c, T2))
        p("v_xor_b32 v%d, v%d, v%d" % (T3, T3, T1))
        p("v_lshlrev_b32 v%d, 4, v%d" % (T3, T3))
        p("v_lshl_add_u32 v%d, v%d, 7, v%d" % (KA + c, T0, T3))
    p("v_add_u32 v%d, s41, v%d" % (KA + 4, LN))
    for u in range(8):
        base = O + 8 * u
        for k in range(8):
            p("v_mul_f32 v%d, v%d, v%d" % (base + k, base + k, AL))
        dst = Q + 4 * u
        for k in range(4):
            p("v_cvt_pk_bf16_f32 v%d, v%d, v%d" % (dst + k, base + 2 * k, base + 2 * k + 1))
        p("v_permlane32_swap_b32 v%d, v%d" % (dst, dst + 2))
        p("v_permlane32_swap_b32 v%d, v%d" % (dst + 1, dst + 3))
        p("ds_write_b128 v%d, %s offset:%d" % (KA + u % 4, vr(dst, 4), (u // 4) * SLOT))
        if u % 4 == 3:
            for q in range(4):
                p("ds_read_b128 %s, v%d offset:%d" % (vr(96 + 16 * (u // 4) + 4 * q, 4), KA + 4, (u // 4) * SLOT + q * 1024))
    for u in range(8):
        p("buffer_store_dwordx4 %s, v%d, s[36:39], %s offen offset:%d sc1" % (vr(96 + 4 * u, 4), LN, "s43" if u < 4 else "s42", (u % 4) * 1024))
    lane_parts()
    wa_setup()
    p("s_lshl_b32 s56, s15, 2")
    p("s_add_u32 s56, s56, s18")
    p("s_lshl_b32 s56, s56, 7")
    p("s_lshl_b32 s42, s19, 3")
    p("s_add_u32 s56, s56, s42")
    p("s_add_u32 s56, s56, 0x%x" % FLAG_OFF)
    p("s_waitcnt lgkmcnt(0)")
    stamp(p, opts)
    p("s_mov_b32 s90, 1")
    p("s_mov_b32 s88, 1")
    p("s_branch GEMM")
    p.label("TAIL_CONT")
    p.lgkm = []
    p.vm = []
    stamp(p, opts)
    p("s_lshl_b32 s40, s15, 5")
    p("s_add_u32 s40, s40, s19")
    p("s_lshl_b32 s40, s40, 16")
    p("s_add_u32 s40, s40, 0x%x" % PART_OFF)
    p("s_lshl_b32 s41, s14, 12")
    p("s_add_u32 s40, s40, s41")
    p("s_lshl_b32 s41, s18, 14")
    p("s_add_u32 s41, s41, s40")
    for j in range(4):
        p("s_cmp_eq_u32 s18, %d" % j)
        p("s_cbranch_scc1 SKIPST_%d" % j)
        p("s_add_u32 s42, s41, %d" % (j * 8 * 65536))
        for q in range(4):
            p("buffer_store_dwordx4 %s, v%d, s[36:39], s42 offen offset:%d sc1" % (vr(O + 16 * j + 4 * q, 4), LN, q * 1024))
        p.label("SKIPST_%d" % j)
    for j in range(4):
        p("s_cmp_lg_u32 s18, %d" % j)
        p("s_cbranch_scc1 SKIPMV_%d" % j)
        for k in range(16):
            p("v_mov_b32 v%d, v%d" % (64 + k, O + 16 * j + k))
        p.label("SKIPMV_%d" % j)
    if opts.get("pwf", 0):
        p("ds_read_b64 %s, v%d offset:%d" % (vr(KA, 2), FA, F_NONCE))
        p("s_lshl_b32 s57, s15, 3")
        p("s_add_u32 s57, s57, s19")
        p("s_lshl_b32 s57, s57, 7")
        p("s_lshl_b32 s42, s14, 3")
        p("s_add_u32 s57, s57, s42")
        p("s_add_u32 s57, s57, 0x%x" % (FLAG_OFF + 8192))
        p("s_lshl_b32 s42, s18, 5")
        p("s_add_u32 s42, s42, s57")
        p("v_mov_b32 v%d, 0" % X2)
        p("s_waitcnt vmcnt(0) lgkmcnt(0)")
        p("s_mov_b64 exec, 1")
        p("buffer_store_dwordx2 %s, v%d, s[36:39], s42 offen sc1" % (vr(KA, 2), X2))
        p("s_mov_b64 exec, -1")
    else:
        p("s_waitcnt vmcnt(0)")
        p("s_barrier")
    stamp(p, opts)
    lane_to(X1)
    p("s_mov_b32 s84, s70")
    p("s_mov_b32 s85, s71")
    p("s_mov_b32 s86, 0x200000")
    p("s_mov_b32 s87, 0x20000")
    p("v_and_b32 v%d, 31, v%d" % (T0, X1))
    p("v_lshrrev_b32 v%d, 5, v%d" % (T2, X1))
    p("v_lshlrev_b32 v%d, 11, v%d" % (T0, T0))
    p("v_lshl_add_u32 v%d, v%d, 4, v%d" % (T0, T2, T0))
    p("s_lshl_b32 s41, s18, 19")
    p("s_add_u32 s41, s41, s40")
    if opts.get("pwf", 0):
        p("v_and_b32 v%d, 3, v%d" % (T1, X1))
        p("v_lshlrev_b32 v%d, 5, v%d" % (T1, T1))
        p.auto_wait = False
        p.label("POLLW")
        p("buffer_load_dwordx2 %s, v%d, s[36:39], s57 offen sc1" % (vr(KA + 2, 2), T1))
        p("s_waitcnt vmcnt(0)")
        p("v_cmp_ne_u64 vcc, %s, %s" % (vr(KA + 2, 2), vr(KA, 2)))
        p("s_cbranch_vccz POLLW_OK")
        p("s_sleep %d" % opts.get("psleep", 1))
        p("s_sub_u32 s58, s58, 1")
        p("s_cmp_gt_i32 s58, 0")
        p("s_cbranch_scc1 POLLW")
        p.label("POLLW_OK")
        p.auto_wait = True
        p.vm = []
    else:
        p("s_barrier")
    stamp(p, opts)
    for r in range(1, 4):
        p("s_add_u32 s42, s18, %d" % r)
        p("s_and_b32 s42, s42, 3")
        p("s_lshl_b32 s42, s42, 14")
        p("s_add_u32 s42, s42, s41")
        for q in range(4):
            p("buffer_load_dwordx4 %s, v%d, s[36:39], s42 offen offset:%d sc1" % (vr(96 + 16 * (r - 1) + 4 * q, 4), LN, q * 1024))
    p("s_lshl_b32 s42, s15, 2")
    p("s_add_u32 s42, s42, s14")
    p("s_lshl_b32 s42, s42, 16")
    p("s_lshl_b32 s43, s19, 8")
    p("s_add_u32 s42, s42, s43")
    p("s_lshl_b32 s43, s18, 6")
    p("s_add_u32 s42, s42, s43")
    for r in range(3):
        for k in range(16):
            p("v_add_f32 v%d, v%d, v%d" % (64 + k, 64 + k, 96 + 16 * r + k))
    for k in range(8):
        p("v_cvt_pk_bf16_f32 v%d, v%d, v%d" % (80 + k, 64 + 2 * k, 64 + 2 * k + 1))
    for pr in range(2):
        p("v_permlane16_swap_b32 v%d, v%d" % (80 + 4 * pr, 80 + 4 * pr + 2))
        p("v_permlane16_swap_b32 v%d, v%d" % (80 + 4 * pr + 1, 80 + 4 * pr + 3))
        p("buffer_store_dwordx4 %s, v%d, s[84:87], s42 offen offset:%d%s" % (vr(80 + 4 * pr, 4), T0, pr * 32, {0: "", 1: " sc1", 2: " nt", 3: " sc0 sc1"}[opts.get("opol", 0)]))
    if opts.get("stamp"):
        p("s_waitcnt vmcnt(0)")
    stamp(p, opts)
    stamp_flush(p, opts, T1)
    p("s_branch K1_END")
    p.auto_wait = False
    p.label("SIG1")
    p("s_mov_b32 s90, 0")
    p("s_waitcnt vmcnt(0)")
    p("v_mov_b32 v%d, 1" % X1)
    p("s_mov_b64 exec, 1")
    p("ds_add_rtn_u32 v%d, v%d, v%d offset:%d" % (X2, FA, X1, F_C1))
    p("ds_read_b64 %s, v%d offset:%d" % (vr(T0, 2), FA, F_NONCE))
    p("s_waitcnt lgkmcnt(0)")
    p("v_readfirstlane_b32 s53, v%d" % X2)
    p("s_cmp_lg_u32 s53, 3")
    p("s_cbranch_scc1 NOSIG1")
    p("v_mov_b32 v%d, 0" % X2)
    p("buffer_store_dwordx2 %s, v%d, s[36:39], s56 offen sc1" % (vr(T0, 2), X2))
    p.label("NOSIG1")
    p("s_mov_b64 exec, -1")
    p("s_branch SIG1_BACK")
    for tag, sc in rare_blocks:
        p.label("RARE_%s" % tag)
        p("v_mov_b32 v%d, v%d" % (X2, X1))
        p("v_permlane32_swap_b32 v%d, v%d" % (X1, X2))
        p("v_max3_f32 v%d, v%d, v%d, 0" % (X1, X1, X2))
        p("v_sub_f32 v%d, 0, v%d" % (X2, X1))
        p("v_exp_f32 v%d, v%d" % (X2, X2))
        for k in range(16):
            p("v_sub_f32 v%d, v%d, v%d" % (NEGM + k, NEGM + k, X1))
        for k in range(32):
            p("v_sub_f32 v%d, v%d, v%d" % (sc + k, sc + k, X1))
        p("v_mul_f32 v%d, v%d, v%d" % (L, L, X2))
        p("v_mul_f32 v%d, v%d, v%d" % (L2, L2, X2))
        for k in range(64):
            p("v_mul_f32 v%d, v%d, v%d" % (O + k, O + k, X2))
        p("s_nop 1")
        p("s_branch BACK_%s" % tag)
    p.auto_wait = True


def build(opts):
    p = Prog()
    gen_kernel(p, opts)
    n = p.pad_hazards()
    sys.stderr.write("hazard nop states inserted: %d\n" % n)
    s = HEADER
    s += "; @launch grid=(256,1,1) block=(512,1,1) lds=%d\n" % LDS_BYTES
    s += '.amdgcn_target "amdgcn-amd-amdhsa--gfx950"\n.text\n'
    s += p.text()
    s += '.section .rodata,"a"\n'
    s += kd(NAME + "_kernel", 256, 100)
    return s


if __name__ == "__main__":
    out = sys.argv[1]
    opts = {}
    for a in sys.argv[2:]:
        k, v = a.split("=")
        opts[k] = float(v) if "." in v else int(v)
    open(out, "w").write(build(opts))
```

```python
import sys, math, struct
from asmlib import Prog, Inst, check_order
from gen import f32bits, vr, interleave, HEADER, kd, NAME
from gen5 import stamp_init, stamp, stamp_flush, uid

SLOT = 16384
LDS_BYTES = 160 * 1024
KBASE = 0
VBASE = 4 * SLOT
MISC = 9 * SLOT
F_LP, F_CP, F_C1, F_C2, F_G1, F_G2, F_NONCE = 0, 16, 32, 36, 40, 44, 48
F_MB = 64
FLAG_OFF = 48 << 20
PART_OFF = 16 << 20
SPIN_MAX = 1 << 21


def gen_kernel(p, opts):
    K = NAME + "_kernel"
    p.raw(".globl %s\n.p2align 8\n.type %s,@function" % (K, K))
    p.label(K)
    p("s_cmp_ge_u32 s2, 256")
    p("s_cbranch_scc1 K1_END")
    p("s_load_dwordx4 s[4:7], s[0:1], 0")
    p("s_load_dwordx4 s[8:11], s[0:1], 16")
    p("s_load_dwordx4 s[68:71], s[0:1], 32")
    p("s_load_dwordx2 s[72:73], s[0:1], 48")
    p("s_load_dwordx2 s[12:13], s[0:1], 56")
    p("v_lshrrev_b32 v1, 6, v0")
    p("v_and_b32 v0, 63, v0")
    p("v_readfirstlane_b32 s14, v1")
    p("s_and_b32 s40, s2, 7")
    p("s_lshr_b32 s41, s2, 3")
    p("s_lshr_b32 s15, s40, 2")
    p("s_lshl_b32 s15, s15, 2")
    p("s_lshr_b32 s42, s41, 3")
    p("s_add_u32 s15, s15, s42")
    p("s_and_b32 s18, s40, 3")
    if opts.get("hgx"):
        p("s_xor_b32 s18, s18, 1")
    p("s_and_b32 s19, s41, 7")
    p("s_lshl_b32 s16, s18, 3")
    p("s_add_u32 s16, s16, s19")
    p("s_lshl_b32 s17, s15, 5")
    p("s_add_u32 s17, s17, s16")
    p("v_lshlrev_b32 v2, 2, v0")
    p("v_add_u32 v2, %d, v2" % MISC)
    p("v_mov_b32 v3, 0")
    p("ds_write_b32 v2, v3")
    p("s_waitcnt lgkmcnt(0)")
    p.reset_tracking()
    p("s_mov_b32 s36, s12")
    p("s_mov_b32 s37, s13")
    p("s_mov_b32 s38, 0x4000000")
    p("s_mov_b32 s39, 0x20000")
    p("s_mov_b32 s76, s72")
    p("s_mov_b32 s77, s73")
    p("s_mov_b32 s78, 256")
    p("s_mov_b32 s79, 0x20000")
    p("s_mov_b32 s58, %d" % SPIN_MAX)
    if opts.get("bar0", 0):
        p("s_barrier")
    stamp_init(p, opts)
    stamp(p, opts)
    if opts.get("stamp"):
        p("s_getreg_b32 s60, hwreg(HW_REG_XCC_ID)")
        p("v_writelane_b32 v254, s60, 60")
    p("s_cmp_ge_u32 s14, 4")
    p("s_cbranch_scc1 K1_LOADER")
    gen_compute(p, opts)
    p.label("K1_LOADER")
    p.reset_tracking()
    gen_loader(p, opts)
    p.label("K1_END")
    p("s_endpgm")


def gen_loader(p, opts):
    p.auto_wait = False
    p("s_sub_u32 s40, s14, 4")
    p("s_lshl_b32 s41, s40, 12")
    p("s_mov_b32 s45, 0")
    p("s_mov_b32 s48, 0")
    p("s_lshl_b32 s42, s15, 18")
    p("s_add_u32 s20, s4, s42")
    p("s_addc_u32 s21, s5, 0")
    p("s_mov_b32 s22, 0x40000")
    p("s_mov_b32 s23, 0x20000")
    p("s_lshl_b32 s42, s16, 8")
    p("s_add_u32 s24, s10, s42")
    p("s_addc_u32 s25, s11, 0")
    p("s_sub_u32 s26, 0x800000, s42")
    p("s_mov_b32 s27, 0x20000")
    p("v_lshrrev_b32 v1, 4, v0")
    p("v_and_b32 v2, 15, v0")
    p("v_lshrrev_b32 v3, 3, v0")
    p("v_and_b32 v4, 7, v0")
    p("v_lshlrev_b32 v5, 2, v1")
    p("v_xor_b32 v5, v5, v2")
    p("v_lshlrev_b32 v6, 4, v5")
    p("s_lshl_b32 s42, s40, 5")
    for ii in range(4):
        p("v_add_u32 v5, %d, v1" % (4 * (ii & 1)))
        p("v_xor_b32 v5, v5, v4")
        p("v_lshlrev_b32 v5, 4, v5")
        p("v_add_u32 v7, s42, v3")
        p("v_add_u32 v7, %d, v7" % (8 * ii))
        p("v_lshl_add_u32 v5, v7, 11, v5")
        if ii:
            p("v_subrev_u32 v%d, %d, v5" % (20 + ii, ii * 1024))
        else:
            p("v_mov_b32 v20, v5")
    p("s_lshl_b32 s42, s40, 4")
    for ii in range(4):
        p("v_add_u32 v5, s42, v1")
        p("v_add_u32 v5, %d, v5" % (4 * ii))
        p("v_xor_b32 v8, %d, v6" % (32 * ((ii >> 1) & 1)))
        p("v_lshl_add_u32 v7, v5, 13, v8")
        p("v_lshl_add_u32 v5, v5, 11, v8")
        p("v_subrev_u32 v%d, %d, v7" % (16 + ii, ii * 1024))
        p("v_subrev_u32 v%d, %d, v5" % (24 + ii, ii * 1024))
    p("s_lshl_b32 s52, s19, 1")
    p("s_and_b32 s53, s15, 3")
    p("s_lshl_b32 s53, s53, 2")
    p("s_add_u32 s52, s52, s53")
    rot = opts.get("rot", 1)
    if opts.get("ab", 0):
        p("s_lshl_b32 s52, s19, 1")
        p("s_and_b32 s53, s15, 1")
        p("s_lshl_b32 s53, s53, 3")
        p("s_add_u32 s52, s52, s53")
    if rot == 0:
        p("s_mov_b32 s52, 0")
    elif rot == 2:
        p("s_and_b32 s52, s19, 3")
        p("s_and_b32 s53, s15, 3")
        p("s_add_u32 s52, s52, s53")
    elif rot == 3:
        p("s_lshr_b32 s52, s19, 1")
        p("s_and_b32 s53, s15, 1")
        p("s_lshl_b32 s53, s53, 2")
        p("s_add_u32 s52, s52, s53")
    p("v_mov_b32 v9, %d" % MISC)
    p("s_lshl_b32 s42, s40, 2")
    p("v_add_u32 v8, s42, v9")

    def dma(v0r, single, srd, pol):
        for ii in range(4):
            p("buffer_load_dwordx4 v%d, %s, s43 offen offset:%d%s lds" % (v0r if single else v0r + ii, srd, ii * 1024, pol))

    def q_issue(nreg, px="", pw=""):
        p("s_and_b32 s47, %s, 3" % nreg)
        p("s_lshl_b32 s47, s47, 14")
        p("s_add_u32 s47, s47, s41")
        p("s_add_u32 s44, s52, %s" % nreg)
        p("s_and_b32 s44, s44, 15")
        p("s_mov_b32 m0, s47")
        p("s_lshl_b32 s43, s44, 7")
        dma(20, False, "s[20:23]", px)
        p("s_add_u32 m0, s47, %d" % VBASE)
        p("s_lshl_b32 s43, s44, 19")
        dma(16, False, "s[24:27]", pw)

    AB = opts.get("ab", 0)
    NR = opts.get("nr", 14)
    stream = [("K", 0)]
    for i in range(16):
        if i < 15:
            stream.append(("K", i + 1))
        stream.append(("V", i))

    def reg_load(t):
        kind, j = stream[t]
        r0 = 32 + 16 * (t % NR)
        p("s_mov_b32 s43, %d" % (j * 16384))
        for ii in range(4):
            v, srd = (10 + ii, "s[28:31]") if kind == "K" else (14, "s[32:35]")
            p("buffer_load_dwordx4 %s, v%d, %s, s43 offen offset:%d nt" % (vr(r0 + 4 * ii, 4), v, srd, ii * 1024))

    def reg_store(t):
        kind, j = stream[t]
        r0 = 32 + 16 * (t % NR)
        a = 15 if kind == "K" else 3
        for ii in range(4):
            p("ds_write_b128 v%d, %s offset:%d" % (a, vr(r0 + 4 * ii, 4), (j % 4) * SLOT + ii * 1024))

    p("s_lshl_b32 s42, s17, 18")
    p("s_add_u32 s28, s6, s42")
    p("s_addc_u32 s29, s7, 0")
    p("s_mov_b32 s30, 0x40000")
    p("s_mov_b32 s31, 0x20000")
    p("s_add_u32 s32, s8, s42")
    p("s_addc_u32 s33, s9, 0")
    p("s_mov_b32 s34, 0x40000")
    p("s_mov_b32 s35, 0x20000")
    for ii in range(4):
        p("v_add_u32 v5, %d, v1" % (4 * ii))
        p("v_xor_b32 v5, v5, v2")
        p("v_lshlrev_b32 v5, 4, v5")
        p("v_lshl_add_u32 v5, v1, 8, v5")
        p("v_add_u32 v%d, s41, v5" % (10 + ii))
    p("v_lshl_add_u32 v5, v1, 8, v6")
    p("v_add_u32 v14, s41, v5")
    p("v_lshlrev_b32 v5, 4, v0")
    p("v_add_u32 v15, s41, v5")
    p("s_lshl_b32 s42, s18, 21")
    p("s_lshl_b32 s43, s19, 8")
    p("s_add_u32 s42, s42, s43")
    p("s_add_u32 s80, s68, s42")
    p("s_addc_u32 s81, s69, 0")
    p("s_sub_u32 s82, 0x800000, s42")
    p("s_mov_b32 s83, 0x20000")
    p("s_lshl_b32 s54, s19, 1")
    p("s_lshl_b32 s55, s18, 3")
    p("s_lshl_b32 s42, s15, 5")
    p("s_add_u32 s55, s55, s42")
    p("s_lshl_b32 s55, s55, 15")
    p("v_add_u32 v3, %d, v15" % VBASE)
    if AB:
        p("s_bitcmp1_b32 s15, 1")
        p("s_cbranch_scc0 A_START")
        if opts.get("bwpf", 0):
            for n in range(4):
                p("s_add_u32 s44, s52, %d" % n)
                p("s_and_b32 s44, s44, 15")
                p("s_lshl_b32 s43, s44, 19")
                for ii in range(4):
                    p("buffer_load_dwordx4 %s, v%d, s[24:27], s43 offen offset:%d" % (vr(32 + 16 * n + 4 * ii, 4), 16 + ii, ii * 1024))
            p("s_waitcnt vmcnt(4)")
        for t in range(NR):
            reg_load(t)
        p("s_waitcnt vmcnt(%d)" % opts.get("bwait", 8))
        p.label("A_START")
    START = opts.get("start", 2)

    def qi(n):
        p("s_mov_b32 s50, %d" % n)
        m = opts.get("qnt", 0)
        q_issue("s50", " nt" if (m & 1 and n < 2) else "", " nt" if (m & 2 and n < 4) else "")

    def pf(kind, sreg, r0):
        p("s_lshl_b32 s43, %s, %d" % (sreg, 7 if kind == "X" else 19))
        for ii in range(4):
            v, srd = (20 + ii, "s[20:23]") if kind == "X" else (16 + ii, "s[24:27]")
            p("buffer_load_dwordx4 %s, v%d, %s, s43 offen offset:%d" % (vr(r0 + 4 * ii, 4), v, srd, ii * 1024))

    if START == 0:
        for n in range(4):
            qi(n)
        p("s_waitcnt vmcnt(24)")
        p("s_barrier")
        p("s_mov_b32 s50, 4")
    elif START == 2:
        qi(0); qi(1)
        p("s_waitcnt vmcnt(8)")
        p("s_barrier")
        qi(2)
        p("s_waitcnt vmcnt(8)")
        p("s_barrier")
        qi(3); qi(4)
        p("s_mov_b32 s50, 5")
    else:
        p("s_mov_b32 s52, 0")
        p("s_and_b32 s53, s15, 3")
        qi(0); qi(1)
        p("s_waitcnt vmcnt(8)")
        p("s_barrier")
        qi(2)
        p("s_waitcnt vmcnt(8)")
        p("s_barrier")
        qi(3)
        p("s_add_u32 s46, s53, 4")
        pf("W", "s46", 232)
        p("s_add_u32 s46, s19, 4")
        pf("X", "s46", 232)
        p("s_waitcnt vmcnt(16)")
        p("s_barrier")
        p("s_add_u32 s46, s53, 8")
        pf("W", "s46", 232)
        p("s_waitcnt vmcnt(12)")
        p("s_barrier")
        p("s_and_b32 s46, s19, 3")
        p("s_add_u32 s46, s46, 12")
        pf("X", "s46", 232)
        p("s_add_u32 s46, s53, 12")
        pf("W", "s46", 232)
        qi(4); qi(5); qi(6)
        p("s_mov_b32 s50, 7")
    if opts.get("burst", 0) == 3:
        p("s_lshr_b32 s95, s2, 3")
        p("s_add_u32 s95, s95, s2")
        p("s_and_b32 s95, s95, %d" % opts.get("bmask", 7))
        p("s_add_u32 s95, s95, %d" % opts.get("burst0", 8))
        p("s_and_b32 s56, s15, 3")
        p("s_lshl_b32 s56, s56, 2")
    p.label("LA")
    p("s_waitcnt vmcnt(16)")
    p("s_barrier")
    q_issue("s50")
    if opts.get("burst", 0) == 3:
        p("s_cmp_lg_u32 s95, s50")
        p("s_cbranch_scc1 NOEB")
        for n in range(4):
            p("s_add_u32 s43, s56, %d" % n)
            p("s_lshl_b32 s43, s43, 17")
            for ii in range(4):
                p("buffer_load_dwordx4 %s, v%d, s[80:83], s43 offen offset:%d" % (vr(32 + 16 * n + 4 * ii, 4), 24 + ii, ii * 1024))
        p.label("NOEB")
    p("s_add_u32 s50, s50, 1")
    p("s_cmp_lt_u32 s50, 16")
    p("s_cbranch_scc1 LA")
    stamp(p, opts)

    KVP = {0: "", 1: " nt", 2: " sc1", 3: " sc1 nt", 4: " sc0 sc1 nt"}[opts.get("kvp", 1)]
    VP = {0: "", 1: " nt"}[opts.get("vp", opts.get("kvp", 1) & 1)]
    KR = opts.get("kvrot", 0)
    if KR == 1:
        p("s_mul_i32 s96, s17, 5")
    elif KR == 2:
        p("s_lshr_b32 s96, s2, 3")
        p("s_add_u32 s96, s96, s2")
    elif KR == 3:
        p("s_lshl_b32 s96, s18, 2")
        p("s_add_u32 s96, s96, s15")

    def kvoff(j):
        if KR:
            p("s_add_u32 s43, s96, %d" % j)
            p("s_and_b32 s43, s43, 15")
            p("s_lshl_b32 s43, s43, 14")
        else:
            p("s_mov_b32 s43, %d" % (j * 16384))

    def k_issue(j):
        if isinstance(j, int):
            p("s_add_u32 m0, s41, %d" % (KBASE + (j % 4) * SLOT))
            kvoff(j)
        dma(10, False, "s[28:31]", KVP)

    def v_issue(j):
        if isinstance(j, int):
            p("s_add_u32 m0, s41, %d" % (VBASE + (j % 4) * SLOT))
            kvoff(j)
        dma(14, True, "s[32:35]", VP)

    if AB:
        p("s_bitcmp1_b32 s15, 1")
        p("s_cbranch_scc1 B_KV")
    def z_issue(t):
        p("s_add_u32 m0, s41, %d" % (VBASE + (t % 4) * SLOT))
        p("s_add_u32 s43, s54, %d" % t)
        p("s_and_b32 s43, s43, 15")
        p("s_lshl_b32 s43, s43, 17")
        dma(24, False, "s[80:83]", " nt" if (opts.get("znt") and t < 4) else "")

    def o_issue(t):
        p("s_add_u32 m0, s41, %d" % (KBASE + (t % 4) * SLOT))
        p("s_add_u32 s43, s54, %d" % t)
        p("s_and_b32 s43, s43, 15")
        p("s_lshl_b32 s43, s43, 14")
        p("s_add_u32 s43, s43, s55")
        dma(15, True, "s[36:39]", " sc1")

    def zpf(n, rb=None):
        p("s_add_u32 s43, s56, %d" % n)
        p("s_and_b32 s43, s43, 15")
        p("s_lshl_b32 s43, s43, 17")
        for ii in range(4):
            p("buffer_load_dwordx4 %s, v%d, s[80:83], s43 offen offset:%d%s" % (vr((32 + 16 * n if rb is None else rb) + 4 * ii, 4), 24 + ii, ii * 1024, " nt" if opts.get("znt") else ""))

    p("s_and_b32 s56, s15, 3")
    p("s_lshl_b32 s56, s56, 2")
    p("s_add_u32 s56, s56, s54")
    p("s_add_u32 s56, s56, 2")
    p("v_mov_b32 v7, 0")
    p("s_cmp_lg_u32 s2, 0")
    p("s_cbranch_scc1 NONONCE")
    p("s_cmp_lg_u32 s14, 7")
    p("s_cbranch_scc1 NONONCE")
    p("s_memrealtime s[46:47]")
    p("s_waitcnt lgkmcnt(0)")
    p("s_or_b32 s46, s46, 1")
    p("v_mov_b32 v4, s46")
    p("v_mov_b32 v5, s47")
    p("v_mov_b32 v7, 0")
    p("s_mov_b64 exec, 1")
    p("buffer_store_dwordx2 v[4:5], v7, s[76:79], 0 offen sc1")
    p("s_mov_b64 exec, -1")
    p("s_waitcnt vmcnt(0)")
    p.label("NONONCE")
    W = opts.get("kvw", 12)
    SPF = opts.get("spf", 0)
    BURST = opts.get("burst", 0)
    p("s_lshr_b32 s95, s2, 3")
    p("s_add_u32 s95, s95, s2")
    p("s_and_b32 s95, s95, 7")
    p("s_add_u32 s95, s95, %d" % opts.get("burst0", 18))
    p("s_and_b32 s57, s15, 3")
    p("s_lshl_b32 s57, s57, 2")
    p("s_add_u32 s57, s57, s54")
    groups = []
    for t, (kind, j) in enumerate(stream):
        if kind == "K":
            groups.append((("K", j), (lambda j=j: k_issue(j)), 13 + j, 4))
        else:
            if SPF:
                def vpf(j=j):
                    v_issue(j)
                    for q in range(j * SPF, min(16, (j + 1) * SPF)):
                        p("s_add_u32 s43, s57, %d" % (q // 4))
                        p("s_and_b32 s43, s43, 15")
                        p("s_lshl_b32 s43, s43, 17")
                        p("buffer_load_dwordx4 %s, v%d, s[80:83], s43 offen offset:%d" % (vr(32 + 4 * q, 4), 24 + q % 4, (q % 4) * 1024))
                npf = max(0, min(16, (j + 1) * SPF) - j * SPF)
                groups.append((("V", j), vpf, (13 + j) if j < 4 else (14 + j), 4 + npf))
            else:
                groups.append((("V", j), (lambda j=j: v_issue(j)), (13 + j) if j < 4 else (14 + j), 4))
    def nonce_load():
        p("buffer_load_dwordx2 v[28:29], v7, s[76:79], 0 offen sc1")
        if not SPF and not BURST:
            zpf(0)
    groups.append((("pf", 0), nonce_load, 0, 1 if (SPF or BURST) else 5))
    groups.append((("Z", 0), (lambda: z_issue(0)), 30, 4))
    if not SPF and not BURST:
        groups.append((("pf", 1), (lambda: zpf(1)), 0, 4))
    groups.append((("Z", 1), (lambda: z_issue(1)), 31, 4))
    if not SPF and not BURST:
        groups.append((("pf", 2), (lambda: zpf(2)), 0, 4))
        groups.append((("pf", 3), (lambda: zpf(3)), 0, 4))
    out = [("Q", 13)] * 8 + [("Q", 14)] * 8 + [("Q", 15)] * 8
    gi = [0]

    def wait_until(pred):
        last = -1
        for i, e in enumerate(out):
            if pred(e):
                last = i
        if last >= 0:
            n = len(out) - 1 - last
            p("s_waitcnt vmcnt(%d)" % n)
            del out[:last + 1]

    def issue_next(throttle=True):
        name, emit, fr, nl = groups[gi[0]]
        if throttle and len(out) > W - 4:
            p("s_waitcnt vmcnt(%d)" % (W - 4))
            del out[:len(out) - (W - 4)]
        emit()
        out.extend([name] * nl)
        gi[0] += 1

    for n in range(13, 33):
        need = [("Q", n)] if n < 16 else ([("K", 0)] if n == 16 else ([("K", n - 16), ("V", n - 17)] if n < 32 else [("V", 15)]))
        names = [x[0] for x in groups]
        lastneed = max([names.index(x) for x in need if x in names] + [-1])
        while gi[0] < len(groups) and gi[0] <= lastneed + W // 4 and groups[gi[0]][2] <= n - 1:
            issue_next(throttle=(n > 16))
        wait_until(lambda e: e in need)
        p("s_barrier")
        if BURST == 1 and opts.get("burst0", 18) <= n < opts.get("burst0", 18) + 8:
            p("s_cmp_lg_u32 s95, %d" % n)
            p("s_cbranch_scc1 NOBURST_%d" % n)
            for q in range(4):
                zpf(q)
            p.label("NOBURST_%d" % n)
        if n == 28:
            stamp(p, opts)
    while gi[0] < len(groups):
        issue_next(throttle=False)
    p.label("JOIN")
    p("s_lshl_b32 s42, s15, 2")
    p("s_add_u32 s42, s42, s18")
    p("s_lshl_b32 s42, s42, 7")
    p("s_add_u32 s42, s42, 0x%x" % FLAG_OFF)
    p("v_and_b32 v5, 7, v0")
    p("v_lshlrev_b32 v5, 3, v5")
    p("s_lshl_b32 s92, 1, s19")
    p("s_waitcnt vmcnt(0)")
    p.label("NONCE_CHK")
    p("v_cmp_eq_u32 vcc, 0, v28")
    p("s_cbranch_vccz NONCE_OK")
    p("s_sleep 8")
    p("buffer_load_dwordx2 v[28:29], v7, s[76:79], 0 offen sc1")
    p("s_waitcnt vmcnt(0)")
    p("s_sub_u32 s58, s58, 1")
    p("s_cmp_gt_i32 s58, 0")
    p("s_cbranch_scc1 NONCE_CHK")
    p.label("NONCE_OK")
    p("s_mov_b64 exec, 1")
    p("ds_write_b64 v9, v[28:29] offset:%d" % F_NONCE)
    p("s_mov_b64 exec, -1")

    p("s_mov_b32 s94, 0")
    p("v_mov_b32 v100, 0")
    p("v_mov_b32 v101, 0")

    def decide(seq, blocking, tag, keep):
        p("s_lshl_b32 s47, %s, 2" % seq)
        p("v_add_u32 v6, s47, v9")
        p("s_cmp_lg_u32 s14, 4")
        p("s_cbranch_scc1 DR_%s" % tag)
        if keep:
            p("s_waitcnt vmcnt(8)")
            p("v_cmp_eq_u64 vcc, v[100:101], v[28:29]")
            p("s_and_b32 s46, vcc_lo, 0xff")
            p("s_or_b32 s94, s94, s46")
        p("s_andn2_b32 s46, s94, s92")
        p("s_cbranch_scc1 DH_%s" % tag)
        p.label("DP_%s" % tag)
        p("buffer_load_dwordx2 v[30:31], v5, s[36:39], s42 offen sc1")
        p("s_waitcnt vmcnt(0)")
        p("v_cmp_eq_u64 vcc, v[30:31], v[28:29]")
        p("s_and_b32 s94, vcc_lo, 0xff")
        p("s_andn2_b32 s46, s94, s92")
        p("s_cbranch_scc1 DH_%s" % tag)
        if blocking:
            p("s_sleep %d" % opts.get("psleep", 1))
            p("s_sub_u32 s58, s58, 1")
            p("s_cmp_gt_i32 s58, 0")
            p("s_cbranch_scc1 DP_%s" % tag)
            p("s_andn2_b32 s46, 0xff, s92")
        else:
            p("s_mov_b32 s93, 15")
            p("s_branch DW_%s" % tag)
        p.label("DH_%s" % tag)
        p("s_lshl_b32 s47, s46, 8")
        p("s_or_b32 s47, s47, s46")
        p("s_lshr_b32 s47, s47, s19")
        p("s_ff1_i32_b32 s47, s47")
        p("s_add_u32 s47, s47, s19")
        p("s_and_b32 s93, s47, 7")
        p.label("DW_%s" % tag)
        p("s_add_u32 s47, s93, 1")
        p("v_mov_b32 v4, s47")
        p("s_mov_b64 exec, 1")
        p("ds_write_b32 v6, v4 offset:%d" % F_MB)
        p("s_mov_b64 exec, -1")
        p("s_branch DD_%s" % tag)
        p.label("DR_%s" % tag)
        p("ds_read_b32 v4, v6 offset:%d" % F_MB)
        p("s_waitcnt lgkmcnt(0)")
        p("v_readfirstlane_b32 s47, v4")
        p("s_sub_u32 s93, s47, 1")
        p("s_and_b32 s93, s93, 15")
        p("s_sub_u32 s58, s58, 1")
        p("s_cmp_lt_i32 s58, 1")
        p("s_cbranch_scc1 DD_%s" % tag)
        p("s_cmp_eq_u32 s47, 0")
        p("s_cbranch_scc1 DR_%s" % tag)
        p.label("DD_%s" % tag)

    def mark():
        p("s_lshl_b32 s47, 1, s93")
        p("s_or_b32 s92, s92, s47")

    def tile_issue(slot, half):
        p("s_lshl_b32 s44, s93, 1")
        p("s_add_u32 s44, s44, %s" % half)
        if isinstance(slot, int):
            p("s_add_u32 s47, s41, %d" % (slot * SLOT))
        else:
            p("s_add_u32 s47, s41, %s" % slot)
        p("s_mov_b32 m0, s47")
        p("s_lshl_b32 s43, s44, 14")
        p("s_add_u32 s43, s43, s55")
        dma(15, True, "s[36:39]", " sc1")
        p("s_add_u32 m0, s47, %d" % VBASE)
        p("s_lshl_b32 s43, s44, 17")
        dma(24, False, "s[80:83]", "")

    decide(1, False, "E", 0)
    p("s_cmp_eq_u32 s93, 15")
    p("s_cbranch_scc1 NOT_EARLY")
    mark()
    tile_issue(2, 0)
    p.label("NOT_EARLY")
    p("s_waitcnt lgkmcnt(0)")
    stamp(p, opts)
    p("s_barrier")
    p("s_cmp_eq_u32 s93, 15")
    p("s_cbranch_scc1 NOT_EARLY2")
    p("buffer_load_dwordx2 v[100:101], v5, s[36:39], s42 offen sc1")
    tile_issue(3, 1)
    p.label("NOT_EARLY2")
    p("s_barrier")
    p("s_cmp_lg_u32 s93, 15")
    p("s_cbranch_scc1 LATE_SKIP")
    decide(2, True, "L", 0)
    mark()
    tile_issue(2, 0)
    tile_issue(3, 1)
    p.label("LATE_SKIP")
    stamp(p, opts)
    p("s_mov_b32 s50, 4")
    p("s_branch LC_IN")
    p.label("LC")
    p("s_waitcnt vmcnt(16)")
    p("s_barrier")
    p.label("LC_IN")
    p("s_bitcmp1_b32 s50, 0")
    p("s_cbranch_scc1 LC_ODD")
    decide("s50", True, "C", 1)
    mark()
    p("s_branch LC_ISSUE")
    p.label("LC_ODD")
    p("s_cmp_lg_u32 s14, 4")
    p("s_cbranch_scc1 LC_ISSUE")
    p("buffer_load_dwordx2 v[100:101], v5, s[36:39], s42 offen sc1")
    p.label("LC_ISSUE")
    p("s_and_b32 s48, s50, 3")
    p("s_lshl_b32 s48, s48, 14")
    p("s_and_b32 s49, s50, 1")
    tile_issue("s48", "s49")
    p("s_add_u32 s50, s50, 1")
    p("s_cmp_lt_u32 s50, 16")
    p("s_cbranch_scc1 LC")
    p("s_waitcnt vmcnt(16)")
    p("s_barrier")
    p("s_waitcnt vmcnt(8)")
    p("s_barrier")
    p("s_waitcnt vmcnt(0)")
    p("s_barrier")
    stamp(p, opts)
    if opts.get("pwf", 0):
        p("s_branch LDONE")
    p("s_cmp_lg_u32 s14, 4")
    p("s_cbranch_scc1 LDONE")
    p("s_barrier")
    p("s_lshl_b32 s42, s15, 3")
    p("s_add_u32 s42, s42, s19")
    p("s_lshl_b32 s42, s42, 7")
    p("s_add_u32 s42, s42, 0x%x" % (FLAG_OFF + 8192))
    p("s_lshl_b32 s43, s18, 3")
    p("s_add_u32 s43, s43, s42")
    p("v_and_b32 v5, 3, v0")
    p("v_lshlrev_b32 v5, 3, v5")
    p("s_barrier")
    p("s_mov_b64 exec, 1")
    p("buffer_store_dwordx2 v[28:29], v7, s[36:39], s43 offen sc1")
    p("s_mov_b64 exec, -1")
    p.label("POLL2")
    p("buffer_load_dwordx2 v[30:31], v5, s[36:39], s42 offen sc1")
    p("s_waitcnt vmcnt(0)")
    p("v_cmp_ne_u64 vcc, v[30:31], v[28:29]")
    p("s_cbranch_vccz POLL2_OK")
    p("s_sleep %d" % opts.get("psleep", 1))
    p("s_sub_u32 s58, s58, 1")
    p("s_cmp_gt_i32 s58, 0")
    p("s_cbranch_scc1 POLL2")
    p.label("POLL2_OK")
    p("s_barrier")
    p.label("LDONE")
    stamp(p, opts)
    if not opts.get("dbgst"):
        stamp_flush(p, opts, 5)
    if AB:
        p("s_branch K1_END")
        p.label("B_KV")
        p("s_and_b32 s56, s15, 3")
        p("s_lshl_b32 s56, s56, 2")
        p("s_add_u32 s56, s56, s54")
        p("s_add_u32 s56, s56, 2")
        p("v_mov_b32 v7, 0")
        p("s_waitcnt vmcnt(16)")
        p("s_barrier")
        p("s_waitcnt vmcnt(8)")
        p("s_barrier")
        p("s_waitcnt vmcnt(0)")
        p("s_barrier")
        p.reset_tracking()
        p.auto_wait = True
        nxt = NR
        for n in range(16, 33):
            ts = [0] if n == 16 else ([2 * (n - 17) + 1, 2 * (n - 17) + 2] if n < 32 else [31])
            for t in ts:
                assert t < nxt, (t, nxt, n)
                reg_store(t)
            p("s_waitcnt lgkmcnt(0)")
            p("s_barrier")
            stored = max(ts)
            last_n = opts.get("blast", 29)
            target = NR + int(math.ceil((32 - NR) * (n - 15) / float(last_n - 15)))
            while nxt < 32 and nxt < target and nxt - NR <= stored:
                reg_load(nxt)
                nxt += 1
            if n == 28:
                stamp(p, opts)
            if n == 29:
                p("buffer_load_dwordx2 v[28:29], v7, s[76:79], 0 offen sc1")
                zpf(0, 232)
            if n == 30:
                z_issue(0); zpf(1, 232)
            if n == 31:
                z_issue(1); zpf(2, 232)
            if n == 32:
                zpf(3, 232)
        assert nxt == 32
        p.auto_wait = False
        p("s_branch JOIN")
    p.auto_wait = True


def gen_compute(p, opts):
    O = 0
    Q = 64
    S = [96, 128]
    NEGM = 160
    KF = 176
    NKF = opts.get("nkf", 6)
    KFR = [176 + 4 * i for i in range(6)] + [244]
    L2 = 249
    VF = 200
    KA = 232
    VA = 240
    T0, T1, T2, T3 = 244, 245, 246, 247
    L, CNT, FA, CPA, X1, X2 = 248, 249, 250, 251, 252, 253
    XB = [64, 80]
    WB = [96, 160]
    XA, WA = 224, 226
    TA, TB, TC, TD = 236, 237, 238, 239
    THR = opts.get("thr", 8.0)

    def lane_to(r):
        p("v_mbcnt_lo_u32_b32 v%d, -1, 0" % r)
        p("v_mbcnt_hi_u32_b32 v%d, -1, v%d" % (r, r))

    def lane_parts():
        lane = "v%d" % X1
        p("v_and_b32 v%d, 31, %s" % (TA, lane))
        p("v_lshrrev_b32 v%d, 5, %s" % (TB, lane))
        p("v_bfe_u32 v%d, %s, 2, 2" % (TC, lane))
        p("v_bfe_u32 v%d, %s, 4, 1" % (T1, lane))
        p("v_and_b32 v%d, 3, %s" % (T2, lane))
        p("v_lshlrev_b32 v%d, 3, v%d" % (T2, T2))
        p("v_lshl_add_u32 v%d, v%d, 5, v%d" % (TD, T1, T2))

    def wa_setup():
        lane = "v%d" % X1
        p("v_lshrrev_b32 v%d, 4, %s" % (T0, lane))
        p("v_lshl_add_u32 v%d, v%d, 3, v%d" % (T1, T0, TC))
        p("v_and_b32 v%d, 3, %s" % (T2, lane))
        p("v_lshlrev_b32 v%d, 3, v%d" % (T2, T2))
        p("v_lshl_add_u32 v%d, v%d, 8, v%d" % (T1, T1, T2))
        p("v_add_u32 v%d, %d, v%d" % (T1, VBASE, T1))
        p("v_and_b32 v%d, 1, v%d" % (T2, T0))
        p("v_lshl_add_u32 v%d, v%d, 1, v%d" % (T2, TC, T2))
        for a in range(8):
            p("v_xor_b32 v%d, %d, v%d" % (T3, a, T2))
            p("v_lshl_add_u32 v%d, v%d, 5, v%d" % (WA + a, T3, T1))
        p("v_and_b32 v%d, 15, %s" % (T1, lane))
        p("s_lshl_b32 s40, s14, 5")
        p("v_add_u32 v%d, s40, v%d" % (T1, T1))
        p("v_bfe_u32 v%d, v%d, 1, 3" % (T2, T1))
        for t in range(2):
            p("v_add_u32 v%d, %d, v%d" % (T3, 4 * t, T0))
            p("v_xor_b32 v%d, v%d, v%d" % (T3, T3, T2))
            p("v_lshlrev_b32 v%d, 4, v%d" % (T3, T3))
            p("v_lshl_add_u32 v%d, v%d, 7, v%d" % (XA + t, T1, T3))

    if opts.get("cpf", 1):
        p.raw("    s_getpc_b64 s[60:61]")
        p.label("PCL")
        p.raw("    s_sub_u32 s60, s60, PCL-%s_kernel" % NAME)
        p.raw("    s_subb_u32 s61, s61, 0")
        p("s_mov_b32 s64, s60")
        p("s_mov_b32 s65, s61")
        p.raw("    s_mov_b32 s66, K1_END-%s_kernel" % NAME)
        p("s_mov_b32 s67, 0x20000")
        p("s_lshr_b32 s62, s2, 3")
        p("s_and_b32 s62, s62, 7")
        p("s_lshl_b32 s62, s62, 2")
        p("s_add_u32 s62, s62, s14")
        p("s_lshl_b32 s62, s62, 10")
        p("v_lshlrev_b32 v%d, 4, v0" % T0)
        p("buffer_load_dwordx4 v[100:103], v%d, s[64:67], s62 offen" % T0)
        p.vm = []
    p("v_mov_b32 v%d, v0" % X1)
    p("v_mov_b32 v%d, %d" % (FA, MISC))
    p("s_lshl_b32 s40, s14, 2")
    p("v_add_u32 v%d, s40, v%d" % (CPA, FA))
    p("v_mov_b32 v%d, 0" % CNT)
    lane_parts()
    wa_setup()

    spins = []

    def flag_read():
        return Inst("ds_read_b128 %s, v%d offset:%d" % (vr(T0, 4), FA, F_LP))

    def flag_check(need):
        u = uid()
        p("v_min_u32 v%d, v%d, v%d" % (T0, T0, T1))
        p("v_min3_u32 v%d, v%d, v%d, v%d" % (T0, T0, T2, T3))
        p("v_readfirstlane_b32 s53, v%d" % T0)
        p("s_cmp_ge_u32 s53, %s" % need)
        p("s_cbranch_scc0 SPIN_%d" % u)
        p.label("SPUN_%d" % u)
        spins.append((u, need))

    def done_step(inc="1"):
        p.need([("rd",)])
        p("v_add_u32 v%d, %s, v%d" % (CNT, inc, CNT))
        p("s_mov_b64 exec, 1")
        p("ds_write_b32 v%d, v%d offset:%d" % (CPA, CNT, F_CP))
        p("s_mov_b64 exec, -1")

    def tag_last(rds):
        rds[-1].tokens_out.append(("rd",))

    def gemm_mfmas(s):
        xb, wb = XB[s % 2], WB[s % 2]
        m = []
        for t in range(2):
            for a in range(8):
                for b in range(2):
                    acc = vr(O + 4 * (2 * a + b), 4)
                    m.append(Inst("v_mfma_f32_16x16x32_bf16 %s, %s, %s, %s" % (acc, vr(wb + (t * 8 + a) * 4, 4), vr(xb + (t * 2 + b) * 4, 4), acc)))
        return m

    def g_reads(s):
        off = (s % 4) * SLOT
        xb, wb = XB[s % 2], WB[s % 2]
        r = []
        for t in range(2):
            for b in range(2):
                r.append(Inst("ds_read_b128 %s, v%d offset:%d" % (vr(xb + (t * 2 + b) * 4, 4), XA + t, off + b * 2048)))
            for a in range(8):
                for u in range(2):
                    r.append(Inst("ds_read_b64_tr_b16 %s, v%d offset:%d" % (vr(wb + (t * 8 + a) * 4 + 2 * u, 2), WA + a, off + (32 * t + 4 * u) * 256)))
        return r

    p("s_mov_b32 s88, 0")
    p("s_mov_b32 s90, 0")
    if opts.get("cpf", 1):
        p("s_waitcnt vmcnt(0)")
    p.label("GEMM")
    p.lgkm = []
    for k in range(64):
        p("v_mov_b32 v%d, 0" % (O + k))
    p("s_barrier")
    stamp(p, opts)
    for i in g_reads(0):
        p.add(i)
    p("s_waitcnt lgkmcnt(0)")
    p("s_mov_b32 s51, 4")
    p.label("GLOOP")
    stamp(p, opts)
    RG = opts.get("rgaps", 24)
    for s in range(1, 5):
        rd = g_reads(s)
        mm = gemm_mfmas(s - 1)
        n = len(rd)
        ri = 0
        pre = opts.get("gpre", 2)
        for k, m in enumerate(mm):
            if k == pre:
                p("s_barrier")
            p.add(m)
            if k >= pre:
                kk = k - pre
                hi = min(n, (n * (kk + 1) + RG - 1) // RG)
                for i in rd[ri:hi]:
                    p.add(i)
                ri = max(ri, hi)
        assert ri == n
        p("s_waitcnt lgkmcnt(0)")
        if s == 1:
            p("s_cmp_lg_u32 s90, 0")
            p("s_cbranch_scc1 SIG1")
            p.label("SIG1_BACK")
    p("s_sub_u32 s51, s51, 1")
    p("s_cmp_lg_u32 s51, 0")
    p("s_cbranch_scc1 GLOOP")
    p("s_cmp_lg_u32 s88, 0")
    p("s_cbranch_scc1 TAIL_CONT")
    stamp(p, opts)
    lane = "v%d" % X1
    p("v_and_b32 v%d, 15, %s" % (T1, lane))
    for t in range(8):
        p("v_add_u32 v%d, %d, v%d" % (T2, 2 * t, TB))
        p("v_xor_b32 v%d, v%d, v%d" % (T2, T2, T1))
        p("v_lshlrev_b32 v%d, 4, v%d" % (T2, T2))
        p("v_lshl_add_u32 v%d, v%d, 8, v%d" % (XA + t, TA, T2))
    p("v_lshl_add_u32 v%d, v%d, 2, v%d" % (T2, TB, TC))
    p("v_lshl_add_u32 v%d, v%d, 8, v%d" % (T2, T2, TD))
    for j in range(4):
        p("v_xor_b32 v%d, %d, v%d" % (T0, j, TC))
        p("v_lshl_add_u32 v%d, v%d, 6, v%d" % (T0, T0, T2))
        p("v_add_u32 v%d, %d, v%d" % (VA + j, VBASE, T0))
    for t in range(8):
        p("v_mov_b32 v%d, v%d" % (KA + t, XA + t))
    cval = (128 ** -0.5) * math.log2(math.e)
    p("s_mov_b32 s44, 0x%08x" % f32bits(cval))

    def k_reads(j):
        r = []
        for n in range(16):
            kb, t = n // 8, n % 8
            r.append(Inst("ds_read_b128 %s, v%d offset:%d" % (vr(KFR[n % NKF], 4), KA + t, (j % 4) * SLOT + kb * 8192)))
        return r

    kr0 = k_reads(0)
    tag_last(kr0)
    for i in kr0[:NKF]:
        p.add(i)
    for t in range(8):
        base = O + 8 * t
        for k in range(8):
            p("v_mul_f32 v%d, s44, v%d" % (base + k, base + k))
        for k in range(4):
            p("v_cvt_pk_bf16_f32 v%d, v%d, v%d" % (Q + 4 * t + k, base + 2 * k, base + 2 * k + 1))
    for t in range(8):
        p("v_permlane16_swap_b32 v%d, v%d" % (Q + 4 * t + 0, Q + 4 * t + 2))
        p("v_permlane16_swap_b32 v%d, v%d" % (Q + 4 * t + 1, Q + 4 * t + 3))

    def regs(a, n):
        return [("v", a + k) for k in range(n)]

    def qk_mfmas(sb, first=False):
        m = []
        for n in range(16):
            kb, t = n // 8, n % 8
            c = ("0" if first else vr(NEGM, 16)) if t == 0 else vr(sb + 16 * kb, 16)
            extra = regs(KFR[(n + 1) % NKF], 4) if (n % 2 == 0 and opts.get("pw", 1)) else []
            m.append(Inst("v_mfma_f32_32x32x16_bf16 %s, %s, %s, %s" % (vr(sb + 16 * kb, 16), vr(KFR[n % NKF], 4), vr(Q + 4 * t, 4), c), tokens_in=extra))
        return m

    def v_reads(i):
        r = []
        for n in range(16):
            ks, j = n // 4, n % 4
            for u in range(2):
                r.append(Inst("ds_read_b64_tr_b16 %s, v%d offset:%d" % (vr(VF + 4 * (n % 8) + 2 * u, 2), VA + j, (i % 4) * SLOT + (16 * ks + 8 * u) * 256)))
        return r

    def pv_mfmas(sb):
        m = []
        for n in range(16):
            ks, j = n // 4, n % 4
            extra = regs(VF + 4 * ((n + 1) % 8), 4) if n % 2 == 0 else []
            m.append(Inst("v_mfma_f32_32x32x16_bf16 %s, %s, %s, %s" % (vr(O + 16 * j, 16), vr(VF + 4 * (n % 8), 4), vr(sb + 8 * ks, 4), vr(O + 16 * j, 16)), tokens_in=extra))
        return m

    def exp_group(sb, g):
        b = sb + 8 * g
        ex = [Inst("v_exp_f32 v%d, v%d" % (b + k, b + k)) for k in range(8)]
        if opts.get("l2", 0):
            ad = [Inst("v_add_f32 v%d, v%d, v%d" % ((L, L, b + k) if k % 2 == 0 else (L2, L2, b + k))) for k in range(8)]
        else:
            ad = [Inst("v_add_f32 v%d, v%d, v%d" % (L, L, b + k)) for k in range(8)]
        cv = [Inst("v_cvt_pk_bf16_f32 v%d, v%d, v%d" % (b + k, b + 2 * k, b + 2 * k + 1)) for k in range(4)]
        r = ex + ad + cv
        o = []
        for k in range(8):
            o.append(ex[k])
            if k >= 1:
                o.append(ad[k - 1])
            if k >= 3 and k % 2 == 1:
                o.append(cv[(k - 3) // 2])
        o.append(ad[7])
        o.append(cv[3])
        check_order(r, o)
        return o

    def max_tree(sb):
        r = []
        r.append(Inst("v_max3_f32 v%d, v%d, v%d, v%d" % (X1, sb, sb + 1, sb + 2)))
        r.append(Inst("v_max3_f32 v%d, v%d, v%d, v%d" % (X2, sb + 16, sb + 17, sb + 18)))
        for k in range(3, 15, 2):
            r.append(Inst("v_max3_f32 v%d, v%d, v%d, v%d" % (X1, X1, sb + k, sb + k + 1)))
            r.append(Inst("v_max3_f32 v%d, v%d, v%d, v%d" % (X2, X2, sb + 16 + k, sb + 16 + k + 1)))
        r.append(Inst("v_max3_f32 v%d, v%d, v%d, v%d" % (X1, X1, sb + 15, sb + 31)))
        r.append(Inst("v_max_f32 v%d, v%d, v%d" % (X1, X1, X2)))
        return r

    mm = qk_mfmas(S[0], first=True)
    zero = [Inst("v_mov_b32 v%d, 0" % (O + k)) for k in range(64)] + [Inst("v_mov_b32 v%d, 0" % L), Inst("v_mov_b32 v%d, 0" % L2)]
    seq = []
    zi = 0
    for n in range(16):
        seq.append(mm[n])
        if n + NKF < 16:
            seq.append(kr0[n + NKF])
        seq += zero[zi:zi + 4]; zi += 4
    seq += zero[zi:]
    for i in seq:
        p.add(i)
    for i in max_tree(S[0]):
        p.add(i)
    p("v_mov_b32 v%d, v%d" % (X2, X1))
    p("v_permlane32_swap_b32 v%d, v%d" % (X1, X2))
    p("v_max_f32 v%d, v%d, v%d" % (X1, X1, X2))
    for k in range(16):
        p("v_sub_f32 v%d, 0, v%d" % (NEGM + k, X1))
    for k in range(32):
        p("v_sub_f32 v%d, v%d, v%d" % (S[0] + k, S[0] + k, X1))

    rare_blocks = []

    def iteration(i, tag, qk=True, head=True):
        par = i % 2
        sc, sn = S[par], S[1 - par]
        stamp(p, opts, 2)
        dpv = pv_mfmas(sn)[12:] if head else []
        mt = max_tree(sc) if head else []
        if head:
            p.add(dpv[0])
            for x in mt[:4]:
                p.add(x)
        p("s_waitcnt lgkmcnt(0)")
        p("s_barrier")
        stamp(p, opts, 2)
        kr = k_reads(i + 1) if qk else []
        if head:
            pre = kr[:NKF]
            seq = list(pre[:3])
            fill = pre[3:] + mt[4:]
            per = (len(fill) + 1) // 2
            for k, m in enumerate(dpv[1:]):
                seq.append(m)
                if k < 2:
                    seq += fill[k * per:(k + 1) * per]
            last = seq.pop()
            cmpi = Inst("v_cmp_lt_f32 vcc, 0x%08x, v%d" % (f32bits(THR), X1))
            seq += [cmpi, last]
            check_order(pre + dpv[1:] + mt[4:] + [cmpi], seq)
            for x in seq:
                p.add(x)
            p("s_cbranch_vccnz RARE_%s" % tag)
            p.label("BACK_%s" % tag)
            rare_blocks.append((tag, sc))
        else:
            for x in kr[:NKF]:
                p.add(x)
        vrd = v_reads(i)
        tag_last(vrd)
        pv = pv_mfmas(sc)
        e0, e1, e2, e3 = [exp_group(sc, g) for g in range(4)]
        out = []
        if qk:
            mm = qk_mfmas(sn)
            ref = []
            for n in range(16):
                if n % 2 == 0:
                    for q in (n, n + 1):
                        if q >= NKF:
                            ref.append(kr[q])
                ref.append(mm[n])
            h2 = opts.get("e2split", 8)
            seq_ref = e0 + e1 + e2[:h2] + ref
            fill = e0 + e1 + e2[:h2] + vrd[:16]
            ph1 = interleave(mm, fill, lead=opts.get("lead1", 16))
            res = []
            cnt = 0
            for x in ph1:
                res.append(x)
                if x.kind == "mfma":
                    if cnt + NKF < 16:
                        res.append(kr[cnt + NKF])
                    cnt += 1
            out += res
            rest_e2 = e2[h2:]
        else:
            seq_ref = e0 + e1
            out += vrd[:16] + e0 + e1
            rest_e2 = e2
        fr = []
        npv = 12 if qk else 16
        ref2 = list(rest_e2 + e3)
        for n in range(16):
            if n % 2 == 0:
                ref2 += vrd[2 * n:2 * n + 4]
            if n < npv:
                ref2.append(pv[n])
        seq_ref = seq_ref + ref2 + fr
        a = interleave(pv[:8], rest_e2 + e3[:len(e3) // 2], lead=0)
        bpart = interleave(pv[8:12], e3[len(e3) // 2:] + fr, lead=0)
        res = []
        cnt = 0
        for x in a + bpart:
            res.append(x)
            if x.kind == "mfma":
                if cnt + 8 < 16:
                    res.append(vrd[2 * (cnt + 8)]); res.append(vrd[2 * (cnt + 8) + 1])
                cnt += 1
        out += res
        cpart = pv[12:] if not qk else []
        check_order(seq_ref, out + cpart)
        for x in out + cpart:
            p.add(x)

    if opts.get("cprio"):
        p("s_setprio %d" % opts["cprio"])
    if opts.get("compact", 1):
        for k in range(4):
            p("v_mov_b32 v%d, 0" % (S[1] + 24 + k))
        for k in range(16):
            p("v_mov_b32 v%d, 0" % (VF + 16 + k))
        p("s_waitcnt lgkmcnt(0)")
        p("s_mov_b32 s51, 4")
        saved_items = len(p.items)
        nrb = len(rare_blocks)
        iteration(3, "DRY")
        st = [set(x) for x in p.lgkm]
        del p.items[saved_items:]
        del rare_blocks[nrb:]
        p.lgkm = st
        p.label("K1_LOOP")
        stamp(p, opts)
        for i in range(0, 4):
            iteration(i, "L%d" % i)
        assert opts.get("stamp") or st == p.lgkm
        p("s_sub_u32 s51, s51, 1")
        p("s_cmp_lg_u32 s51, 0")
        p("s_cbranch_scc1 K1_LOOP")
        for m in pv_mfmas(S[1])[12:]:
            p.add(m)
    else:
        iteration(0, "A0", head=False)
        iteration(1, "A1")
        iteration(2, "A2")
        p("s_mov_b32 s51, 3")
        p.label("K1_LOOP")
        entry_state = [set(x) for x in p.lgkm]
        stamp(p, opts)
        for i in range(3, 7):
            iteration(i, "L%d" % i)
        assert opts.get("stamp") or entry_state == p.lgkm, (entry_state, p.lgkm)
        p("s_sub_u32 s51, s51, 1")
        p("s_cmp_lg_u32 s51, 0")
        p("s_cbranch_scc1 K1_LOOP")
        iteration(15, "Z", qk=False)
    stamp(p, opts)
    AL = X2
    p("v_add_f32 v%d, v%d, v%d" % (L, L, L2))
    p("v_mov_b32 v%d, v%d" % (X1, L))
    p("v_permlane32_swap_b32 v%d, v%d" % (L, X1))
    p("v_add_f32 v%d, v%d, v%d" % (L, L, X1))
    p("v_rcp_f32 v%d, v%d" % (AL, L))
    LN = L
    lane_to(X1)
    p("v_lshlrev_b32 v%d, 4, v%d" % (LN, X1))
    p("s_lshl_b32 s43, s17, 15")
    p("s_lshl_b32 s41, s14, 12")
    p("s_add_u32 s43, s43, s41")
    p("s_add_u32 s42, s43, 16384")
    p("v_and_b32 v%d, 31, v%d" % (T0, X1))
    p("s_lshl_b32 s40, s14, 5")
    p("v_add_u32 v%d, s40, v%d" % (T0, T0))
    p("v_bfe_u32 v%d, v%d, 1, 3" % (T1, T0))
    p("v_lshrrev_b32 v%d, 5, v%d" % (T2, X1))
    for c in range(4):
        p("v_add_u32 v%d, %d, v%d" % (T3, 2 * c, T2))
        p("v_xor_b32 v%d, v%d, v%d" % (T3, T3, T1))
        p("v_lshlrev_b32 v%d, 4, v%d" % (T3, T3))
        p("v_lshl_add_u32 v%d, v%d, 7, v%d" % (KA + c, T0, T3))
    p("v_add_u32 v%d, s41, v%d" % (KA + 4, LN))
    for u in range(8):
        base = O + 8 * u
        for k in range(8):
            p("v_mul_f32 v%d, v%d, v%d" % (base + k, base + k, AL))
        dst = Q + 4 * u
        for k in range(4):
            p("v_cvt_pk_bf16_f32 v%d, v%d, v%d" % (dst + k, base + 2 * k, base + 2 * k + 1))
        p("v_permlane32_swap_b32 v%d, v%d" % (dst, dst + 2))
        p("v_permlane32_swap_b32 v%d, v%d" % (dst + 1, dst + 3))
        p("ds_write_b128 v%d, %s offset:%d" % (KA + u % 4, vr(dst, 4), (u // 4) * SLOT))
        if u % 4 == 3:
            for q in range(4):
                p("ds_read_b128 %s, v%d offset:%d" % (vr(96 + 16 * (u // 4) + 4 * q, 4), KA + 4, (u // 4) * SLOT + q * 1024))
    for u in range(8):
        p("buffer_store_dwordx4 %s, v%d, s[36:39], %s offen offset:%d sc1" % (vr(96 + 4 * u, 4), LN, "s43" if u < 4 else "s42", (u % 4) * 1024))
    lane_parts()
    wa_setup()
    p("s_lshl_b32 s56, s15, 2")
    p("s_add_u32 s56, s56, s18")
    p("s_lshl_b32 s56, s56, 7")
    p("s_lshl_b32 s42, s19, 3")
    p("s_add_u32 s56, s56, s42")
    p("s_add_u32 s56, s56, 0x%x" % FLAG_OFF)
    p("s_waitcnt lgkmcnt(0)")
    stamp(p, opts)
    p("s_mov_b32 s90, 1")
    p("s_mov_b32 s88, 1")
    p("s_branch GEMM")
    p.label("TAIL_CONT")
    p.lgkm = []
    p.vm = []
    stamp(p, opts)
    p("s_lshl_b32 s40, s15, 5")
    p("s_add_u32 s40, s40, s19")
    p("s_lshl_b32 s40, s40, 16")
    p("s_add_u32 s40, s40, 0x%x" % PART_OFF)
    p("s_lshl_b32 s41, s14, 12")
    p("s_add_u32 s40, s40, s41")
    p("s_lshl_b32 s41, s18, 14")
    p("s_add_u32 s41, s41, s40")
    for j in range(4):
        p("s_cmp_eq_u32 s18, %d" % j)
        p("s_cbranch_scc1 SKIPST_%d" % j)
        p("s_add_u32 s42, s41, %d" % (j * 8 * 65536))
        for q in range(4):
            p("buffer_store_dwordx4 %s, v%d, s[36:39], s42 offen offset:%d sc1" % (vr(O + 16 * j + 4 * q, 4), LN, q * 1024))
        p.label("SKIPST_%d" % j)
    for j in range(4):
        p("s_cmp_lg_u32 s18, %d" % j)
        p("s_cbranch_scc1 SKIPMV_%d" % j)
        for k in range(16):
            p("v_mov_b32 v%d, v%d" % (64 + k, O + 16 * j + k))
        p.label("SKIPMV_%d" % j)
    if opts.get("pwf", 0):
        p("ds_read_b64 %s, v%d offset:%d" % (vr(KA, 2), FA, F_NONCE))
        p("s_lshl_b32 s57, s15, 3")
        p("s_add_u32 s57, s57, s19")
        p("s_lshl_b32 s57, s57, 7")
        p("s_lshl_b32 s42, s14, 3")
        p("s_add_u32 s57, s57, s42")
        p("s_add_u32 s57, s57, 0x%x" % (FLAG_OFF + 8192))
        p("s_lshl_b32 s42, s18, 5")
        p("s_add_u32 s42, s42, s57")
        p("v_mov_b32 v%d, 0" % X2)
        p("s_waitcnt vmcnt(0) lgkmcnt(0)")
        p("s_mov_b64 exec, 1")
        p("buffer_store_dwordx2 %s, v%d, s[36:39], s42 offen sc1" % (vr(KA, 2), X2))
        p("s_mov_b64 exec, -1")
    else:
        p("s_waitcnt vmcnt(0)")
        p("s_barrier")
    stamp(p, opts)
    lane_to(X1)
    p("s_mov_b32 s84, s70")
    p("s_mov_b32 s85, s71")
    p("s_mov_b32 s86, 0x200000")
    p("s_mov_b32 s87, 0x20000")
    p("v_and_b32 v%d, 31, v%d" % (T0, X1))
    p("v_lshrrev_b32 v%d, 5, v%d" % (T2, X1))
    p("v_lshlrev_b32 v%d, 11, v%d" % (T0, T0))
    p("v_lshl_add_u32 v%d, v%d, 4, v%d" % (T0, T2, T0))
    p("s_lshl_b32 s41, s18, 19")
    p("s_add_u32 s41, s41, s40")
    if opts.get("pwf", 0):
        p("v_and_b32 v%d, 3, v%d" % (T1, X1))
        p("v_lshlrev_b32 v%d, 5, v%d" % (T1, T1))
        p.auto_wait = False
        p.label("POLLW")
        p("buffer_load_dwordx2 %s, v%d, s[36:39], s57 offen sc1" % (vr(KA + 2, 2), T1))
        p("s_waitcnt vmcnt(0)")
        p("v_cmp_ne_u64 vcc, %s, %s" % (vr(KA + 2, 2), vr(KA, 2)))
        p("s_cbranch_vccz POLLW_OK")
        p("s_sleep %d" % opts.get("psleep", 1))
        p("s_sub_u32 s58, s58, 1")
        p("s_cmp_gt_i32 s58, 0")
        p("s_cbranch_scc1 POLLW")
        p.label("POLLW_OK")
        p.auto_wait = True
        p.vm = []
    else:
        p("s_barrier")
    stamp(p, opts)
    for r in range(1, 4):
        p("s_add_u32 s42, s18, %d" % r)
        p("s_and_b32 s42, s42, 3")
        p("s_lshl_b32 s42, s42, 14")
        p("s_add_u32 s42, s42, s41")
        for q in range(4):
            p("buffer_load_dwordx4 %s, v%d, s[36:39], s42 offen offset:%d sc1" % (vr(96 + 16 * (r - 1) + 4 * q, 4), LN, q * 1024))
    p("s_lshl_b32 s42, s15, 2")
    p("s_add_u32 s42, s42, s14")
    p("s_lshl_b32 s42, s42, 16")
    p("s_lshl_b32 s43, s19, 8")
    p("s_add_u32 s42, s42, s43")
    p("s_lshl_b32 s43, s18, 6")
    p("s_add_u32 s42, s42, s43")
    for r in range(3):
        for k in range(16):
            p("v_add_f32 v%d, v%d, v%d" % (64 + k, 64 + k, 96 + 16 * r + k))
    for k in range(8):
        p("v_cvt_pk_bf16_f32 v%d, v%d, v%d" % (80 + k, 64 + 2 * k, 64 + 2 * k + 1))
    for pr in range(2):
        p("v_permlane16_swap_b32 v%d, v%d" % (80 + 4 * pr, 80 + 4 * pr + 2))
        p("v_permlane16_swap_b32 v%d, v%d" % (80 + 4 * pr + 1, 80 + 4 * pr + 3))
        p("buffer_store_dwordx4 %s, v%d, s[84:87], s42 offen offset:%d%s" % (vr(80 + 4 * pr, 4), T0, pr * 32, {0: "", 1: " sc1", 2: " nt", 3: " sc0 sc1"}[opts.get("opol", 0)]))
    if opts.get("stamp"):
        p("s_waitcnt vmcnt(0)")
    stamp(p, opts)
    if opts.get("dbgst"):
        p("s_cmp_lg_u32 s14, 0")
        p("s_cbranch_scc1 NODBG")
        p("s_mov_b32 s42, 8")
        p("s_cmp_eq_u32 s2, 8")
        p("s_cbranch_scc1 DODBG")
        p("s_mov_b32 s42, 36")
        p("s_cmp_lg_u32 s2, 133")
        p("s_cbranch_scc1 NODBG")
        p.label("DODBG")
        p("v_readlane_b32 s43, v254, 0")
        for n, idx in enumerate([1, 6, 11, 14, 18, 20, 21]):
            p("v_readlane_b32 s60, v254, %d" % idx)
            p("s_sub_u32 s60, s60, s43")
            p("v_writelane_b32 v%d, s60, %d" % (T2, n))
        lane_to(T1)
        p("v_lshlrev_b32 v%d, 2, v%d" % (T1, T1))
        p("s_mov_b64 exec, 0x7f")
        p("buffer_store_dword v%d, v%d, s[76:79], s42 offen" % (T2, T1))
        p("s_mov_b64 exec, -1")
        p.label("NODBG")
    else:
        stamp_flush(p, opts, T1)
    p("s_branch K1_END")
    p.auto_wait = False
    p.label("SIG1")
    p("s_mov_b32 s90, 0")
    p("s_waitcnt vmcnt(0)")
    p("v_mov_b32 v%d, 1" % X1)
    p("s_mov_b64 exec, 1")
    p("ds_add_rtn_u32 v%d, v%d, v%d offset:%d" % (X2, FA, X1, F_C1))
    p("ds_read_b64 %s, v%d offset:%d" % (vr(T0, 2), FA, F_NONCE))
    p("s_waitcnt lgkmcnt(0)")
    p("v_readfirstlane_b32 s53, v%d" % X2)
    p("s_cmp_lg_u32 s53, 3")
    p("s_cbranch_scc1 NOSIG1")
    p("v_mov_b32 v%d, 0" % X2)
    p("buffer_store_dwordx2 %s, v%d, s[36:39], s56 offen sc1" % (vr(T0, 2), X2))
    p.label("NOSIG1")
    p("s_mov_b64 exec, -1")
    p("s_branch SIG1_BACK")
    for tag, sc in rare_blocks:
        p.label("RARE_%s" % tag)
        p("v_mov_b32 v%d, v%d" % (X2, X1))
        p("v_permlane32_swap_b32 v%d, v%d" % (X1, X2))
        p("v_max3_f32 v%d, v%d, v%d, 0" % (X1, X1, X2))
        p("v_sub_f32 v%d, 0, v%d" % (X2, X1))
        p("v_exp_f32 v%d, v%d" % (X2, X2))
        for k in range(16):
            p("v_sub_f32 v%d, v%d, v%d" % (NEGM + k, NEGM + k, X1))
        for k in range(32):
            p("v_sub_f32 v%d, v%d, v%d" % (sc + k, sc + k, X1))
        p("v_mul_f32 v%d, v%d, v%d" % (L, L, X2))
        p("v_mul_f32 v%d, v%d, v%d" % (L2, L2, X2))
        for k in range(64):
            p("v_mul_f32 v%d, v%d, v%d" % (O + k, O + k, X2))
        p("s_nop 1")
        p("s_branch BACK_%s" % tag)
    p.auto_wait = True


def build(opts):
    p = Prog()
    gen_kernel(p, opts)
    n = p.pad_hazards()
    sys.stderr.write("hazard nop states inserted: %d\n" % n)
    s = HEADER
    s += "; @launch grid=(256,1,1) block=(512,1,1) lds=%d\n" % LDS_BYTES
    s += '.amdgcn_target "amdgcn-amd-amdhsa--gfx950"\n.text\n'
    s += p.text()
    s += '.section .rodata,"a"\n'
    s += kd(NAME + "_kernel", 256, 100)
    return s


if __name__ == "__main__":
    out = sys.argv[1]
    opts = {}
    for a in sys.argv[2:]:
        k, v = a.split("=")
        opts[k] = float(v) if "." in v else int(v)
    open(out, "w").write(build(opts))
```

```python
import sys, math, struct
from asmlib import Prog, Inst, check_order
from gen import f32bits, vr, interleave, HEADER, kd, NAME
from gen5 import stamp_init, stamp, stamp_flush, uid

SLOT = 16384
LDS_BYTES = 160 * 1024
KBASE = 0
VBASE = 4 * SLOT
MISC = 9 * SLOT
F_LP, F_CP, F_C1, F_C2, F_G1, F_G2, F_NONCE = 0, 16, 32, 36, 40, 44, 48
F_MB = 64
FLAG_OFF = 48 << 20
PART_OFF = 16 << 20
SPIN_MAX = 1 << 21


def gen_kernel(p, opts):
    K = NAME + "_kernel"
    p.raw(".globl %s\n.p2align 8\n.type %s,@function" % (K, K))
    p.label(K)
    p("s_cmp_ge_u32 s2, 256")
    p("s_cbranch_scc1 K1_END")
    p("s_load_dwordx4 s[4:7], s[0:1], 0")
    p("s_load_dwordx4 s[8:11], s[0:1], 16")
    p("s_load_dwordx4 s[68:71], s[0:1], 32")
    p("s_load_dwordx2 s[72:73], s[0:1], 48")
    p("s_load_dwordx2 s[12:13], s[0:1], 56")
    p("v_lshrrev_b32 v1, 6, v0")
    p("v_and_b32 v0, 63, v0")
    p("v_readfirstlane_b32 s14, v1")
    p("s_and_b32 s40, s2, 7")
    p("s_lshr_b32 s41, s2, 3")
    p("s_lshr_b32 s15, s40, 2")
    p("s_lshl_b32 s15, s15, 2")
    p("s_lshr_b32 s42, s41, 3")
    p("s_add_u32 s15, s15, s42")
    p("s_and_b32 s18, s40, 3")
    if opts.get("hgx"):
        p("s_xor_b32 s18, s18, 1")
    p("s_and_b32 s19, s41, 7")
    p("s_lshl_b32 s16, s18, 3")
    p("s_add_u32 s16, s16, s19")
    p("s_lshl_b32 s17, s15, 5")
    p("s_add_u32 s17, s17, s16")
    p("v_lshlrev_b32 v2, 2, v0")
    p("v_add_u32 v2, %d, v2" % MISC)
    p("v_mov_b32 v3, 0")
    p("ds_write_b32 v2, v3")
    p("s_waitcnt lgkmcnt(0)")
    p.reset_tracking()
    p("s_mov_b32 s36, s12")
    p("s_mov_b32 s37, s13")
    p("s_mov_b32 s38, 0x4000000")
    p("s_mov_b32 s39, 0x20000")
    p("s_mov_b32 s76, s72")
    p("s_mov_b32 s77, s73")
    p("s_mov_b32 s78, 256")
    p("s_mov_b32 s79, 0x20000")
    p("s_mov_b32 s58, %d" % SPIN_MAX)
    if opts.get("bar0", 0):
        p("s_barrier")
    stamp_init(p, opts)
    stamp(p, opts)
    if opts.get("stamp"):
        p("s_getreg_b32 s60, hwreg(HW_REG_XCC_ID)")
        p("v_writelane_b32 v254, s60, 60")
    p("s_cmp_ge_u32 s14, 4")
    p("s_cbranch_scc1 K1_LOADER")
    gen_compute(p, opts)
    p.label("K1_LOADER")
    p.reset_tracking()
    gen_loader(p, opts)
    p.label("K1_END")
    p("s_endpgm")


def gen_loader(p, opts):
    p.auto_wait = False
    p("s_sub_u32 s40, s14, 4")
    p("s_lshl_b32 s41, s40, 12")
    p("s_mov_b32 s45, 0")
    p("s_mov_b32 s48, 0")
    p("s_lshl_b32 s42, s15, 18")
    p("s_add_u32 s20, s4, s42")
    p("s_addc_u32 s21, s5, 0")
    p("s_mov_b32 s22, 0x40000")
    p("s_mov_b32 s23, 0x20000")
    p("s_lshl_b32 s42, s16, 8")
    p("s_add_u32 s24, s10, s42")
    p("s_addc_u32 s25, s11, 0")
    p("s_sub_u32 s26, 0x800000, s42")
    p("s_mov_b32 s27, 0x20000")
    p("v_lshrrev_b32 v1, 4, v0")
    p("v_and_b32 v2, 15, v0")
    p("v_lshrrev_b32 v3, 3, v0")
    p("v_and_b32 v4, 7, v0")
    p("v_lshlrev_b32 v5, 2, v1")
    p("v_xor_b32 v5, v5, v2")
    p("v_lshlrev_b32 v6, 4, v5")
    p("s_lshl_b32 s42, s40, 5")
    for ii in range(4):
        p("v_add_u32 v5, %d, v1" % (4 * (ii & 1)))
        p("v_xor_b32 v5, v5, v4")
        p("v_lshlrev_b32 v5, 4, v5")
        p("v_add_u32 v7, s42, v3")
        p("v_add_u32 v7, %d, v7" % (8 * ii))
        p("v_lshl_add_u32 v5, v7, 11, v5")
        if ii:
            p("v_subrev_u32 v%d, %d, v5" % (20 + ii, ii * 1024))
        else:
            p("v_mov_b32 v20, v5")
    p("s_lshl_b32 s42, s40, 4")
    for ii in range(4):
        p("v_add_u32 v5, s42, v1")
        p("v_add_u32 v5, %d, v5" % (4 * ii))
        p("v_xor_b32 v8, %d, v6" % (32 * ((ii >> 1) & 1)))
        p("v_lshl_add_u32 v7, v5, 13, v8")
        p("v_lshl_add_u32 v5, v5, 11, v8")
        p("v_subrev_u32 v%d, %d, v7" % (16 + ii, ii * 1024))
        p("v_subrev_u32 v%d, %d, v5" % (24 + ii, ii * 1024))
    p("s_lshl_b32 s52, s19, 1")
    p("s_and_b32 s53, s15, 3")
    p("s_lshl_b32 s53, s53, 2")
    p("s_add_u32 s52, s52, s53")
    rot = opts.get("rot", 1)
    if opts.get("ab", 0):
        p("s_lshl_b32 s52, s19, 1")
        p("s_and_b32 s53, s15, 1")
        p("s_lshl_b32 s53, s53, 3")
        p("s_add_u32 s52, s52, s53")
    if rot == 0:
        p("s_mov_b32 s52, 0")
    elif rot == 2:
        p("s_and_b32 s52, s19, 3")
        p("s_and_b32 s53, s15, 3")
        p("s_add_u32 s52, s52, s53")
    elif rot == 3:
        p("s_lshr_b32 s52, s19, 1")
        p("s_and_b32 s53, s15, 1")
        p("s_lshl_b32 s53, s53, 2")
        p("s_add_u32 s52, s52, s53")
    p("v_mov_b32 v9, %d" % MISC)
    p("s_lshl_b32 s42, s40, 2")
    p("v_add_u32 v8, s42, v9")

    hook = [None]

    def dma(v0r, single, srd, pol):
        for ii in range(4):
            if hook[0] is not None:
                hook[0](ii)
            p("buffer_load_dwordx4 v%d, %s, s43 offen offset:%d%s lds" % (v0r if single else v0r + ii, srd, ii * 1024, pol))

    def q_issue(nreg, px="", pw=""):
        p("s_and_b32 s47, %s, 3" % nreg)
        p("s_lshl_b32 s47, s47, 14")
        p("s_add_u32 s47, s47, s41")
        p("s_add_u32 s44, s52, %s" % nreg)
        p("s_and_b32 s44, s44, 15")
        p("s_mov_b32 m0, s47")
        p("s_lshl_b32 s43, s44, 7")
        dma(20, False, "s[20:23]", px)
        p("s_add_u32 m0, s47, %d" % VBASE)
        p("s_lshl_b32 s43, s44, 19")
        dma(16, False, "s[24:27]", pw)

    AB = opts.get("ab", 0)
    NR = opts.get("nr", 14)
    stream = [("K", 0)]
    for i in range(16):
        if i < 15:
            stream.append(("K", i + 1))
        stream.append(("V", i))

    def reg_load(t):
        kind, j = stream[t]
        r0 = 32 + 16 * (t % NR)
        p("s_mov_b32 s43, %d" % (j * 16384))
        for ii in range(4):
            v, srd = (10 + ii, "s[28:31]") if kind == "K" else (14, "s[32:35]")
            p("buffer_load_dwordx4 %s, v%d, %s, s43 offen offset:%d nt" % (vr(r0 + 4 * ii, 4), v, srd, ii * 1024))

    def reg_store(t):
        kind, j = stream[t]
        r0 = 32 + 16 * (t % NR)
        a = 15 if kind == "K" else 3
        for ii in range(4):
            p("ds_write_b128 v%d, %s offset:%d" % (a, vr(r0 + 4 * ii, 4), (j % 4) * SLOT + ii * 1024))

    p("s_lshl_b32 s42, s17, 18")
    p("s_add_u32 s28, s6, s42")
    p("s_addc_u32 s29, s7, 0")
    p("s_mov_b32 s30, 0x40000")
    p("s_mov_b32 s31, 0x20000")
    p("s_add_u32 s32, s8, s42")
    p("s_addc_u32 s33, s9, 0")
    p("s_mov_b32 s34, 0x40000")
    p("s_mov_b32 s35, 0x20000")
    for ii in range(4):
        p("v_add_u32 v5, %d, v1" % (4 * ii))
        p("v_xor_b32 v5, v5, v2")
        p("v_lshlrev_b32 v5, 4, v5")
        p("v_lshl_add_u32 v5, v1, 8, v5")
        p("v_add_u32 v%d, s41, v5" % (10 + ii))
    p("v_lshl_add_u32 v5, v1, 8, v6")
    p("v_add_u32 v14, s41, v5")
    p("v_lshlrev_b32 v5, 4, v0")
    p("v_add_u32 v15, s41, v5")
    p("s_lshl_b32 s42, s18, 21")
    p("s_lshl_b32 s43, s19, 8")
    p("s_add_u32 s42, s42, s43")
    p("s_add_u32 s80, s68, s42")
    p("s_addc_u32 s81, s69, 0")
    p("s_sub_u32 s82, 0x800000, s42")
    p("s_mov_b32 s83, 0x20000")
    p("s_lshl_b32 s54, s19, 1")
    p("s_lshl_b32 s55, s18, 3")
    p("s_lshl_b32 s42, s15, 5")
    p("s_add_u32 s55, s55, s42")
    p("s_lshl_b32 s55, s55, 15")
    p("v_add_u32 v3, %d, v15" % VBASE)
    if AB:
        p("s_bitcmp1_b32 s15, 1")
        p("s_cbranch_scc0 A_START")
        if opts.get("bwpf", 0):
            for n in range(4):
                p("s_add_u32 s44, s52, %d" % n)
                p("s_and_b32 s44, s44, 15")
                p("s_lshl_b32 s43, s44, 19")
                for ii in range(4):
                    p("buffer_load_dwordx4 %s, v%d, s[24:27], s43 offen offset:%d" % (vr(32 + 16 * n + 4 * ii, 4), 16 + ii, ii * 1024))
            p("s_waitcnt vmcnt(4)")
        for t in range(NR):
            reg_load(t)
        p("s_waitcnt vmcnt(%d)" % opts.get("bwait", 8))
        p.label("A_START")
    START = opts.get("start", 2)

    def qi(n):
        p("s_mov_b32 s50, %d" % n)
        m = opts.get("qnt", 0)
        q_issue("s50", " nt" if (m & 1 and n < 2) else "", " nt" if (m & 2 and n < 4) else "")

    def pf(kind, sreg, r0):
        p("s_lshl_b32 s43, %s, %d" % (sreg, 7 if kind == "X" else 19))
        for ii in range(4):
            v, srd = (20 + ii, "s[20:23]") if kind == "X" else (16 + ii, "s[24:27]")
            p("buffer_load_dwordx4 %s, v%d, %s, s43 offen offset:%d" % (vr(r0 + 4 * ii, 4), v, srd, ii * 1024))

    if START == 0:
        for n in range(4):
            qi(n)
        p("s_waitcnt vmcnt(24)")
        p("s_barrier")
        p("s_mov_b32 s50, 4")
    elif START == 2:
        qi(0); qi(1)
        p("s_waitcnt vmcnt(8)")
        p("s_barrier")
        qi(2)
        p("s_waitcnt vmcnt(8)")
        p("s_barrier")
        qi(3); qi(4)
        p("s_mov_b32 s50, 5")
    else:
        p("s_mov_b32 s52, 0")
        p("s_and_b32 s53, s15, 3")
        qi(0); qi(1)
        p("s_waitcnt vmcnt(8)")
        p("s_barrier")
        qi(2)
        p("s_waitcnt vmcnt(8)")
        p("s_barrier")
        qi(3)
        p("s_add_u32 s46, s53, 4")
        pf("W", "s46", 232)
        p("s_add_u32 s46, s19, 4")
        pf("X", "s46", 232)
        p("s_waitcnt vmcnt(16)")
        p("s_barrier")
        p("s_add_u32 s46, s53, 8")
        pf("W", "s46", 232)
        p("s_waitcnt vmcnt(12)")
        p("s_barrier")
        p("s_and_b32 s46, s19, 3")
        p("s_add_u32 s46, s46, 12")
        pf("X", "s46", 232)
        p("s_add_u32 s46, s53, 12")
        pf("W", "s46", 232)
        qi(4); qi(5); qi(6)
        p("s_mov_b32 s50, 7")
    if opts.get("burst", 0) == 3:
        p("s_lshr_b32 s95, s2, 3")
        p("s_add_u32 s95, s95, s2")
        p("s_and_b32 s95, s95, %d" % opts.get("bmask", 7))
        p("s_add_u32 s95, s95, %d" % opts.get("burst0", 8))
        p("s_and_b32 s56, s15, 3")
        p("s_lshl_b32 s56, s56, 2")
    p.label("LA")
    p("s_waitcnt vmcnt(16)")
    p("s_barrier")
    q_issue("s50")
    if opts.get("burst", 0) == 3:
        p("s_cmp_lg_u32 s95, s50")
        p("s_cbranch_scc1 NOEB")
        for n in range(4):
            p("s_add_u32 s43, s56, %d" % n)
            p("s_lshl_b32 s43, s43, 17")
            for ii in range(4):
                p("buffer_load_dwordx4 %s, v%d, s[80:83], s43 offen offset:%d" % (vr(32 + 16 * n + 4 * ii, 4), 24 + ii, ii * 1024))
        p.label("NOEB")
    p("s_add_u32 s50, s50, 1")
    p("s_cmp_lt_u32 s50, 16")
    p("s_cbranch_scc1 LA")
    stamp(p, opts)

    KVP = {0: "", 1: " nt", 2: " sc1", 3: " sc1 nt", 4: " sc0 sc1 nt"}[opts.get("kvp", 1)]
    VP = {0: "", 1: " nt"}[opts.get("vp", opts.get("kvp", 1) & 1)]
    KR = opts.get("kvrot", 0)
    if KR == 1:
        p("s_mul_i32 s96, s17, 5")
    elif KR == 2:
        p("s_lshr_b32 s96, s2, 3")
        p("s_add_u32 s96, s96, s2")
    elif KR == 3:
        p("s_lshl_b32 s96, s18, 2")
        p("s_add_u32 s96, s96, s15")

    def kvoff(j):
        if KR:
            p("s_add_u32 s43, s96, %d" % j)
            p("s_and_b32 s43, s43, 15")
            p("s_lshl_b32 s43, s43, 14")
        else:
            p("s_mov_b32 s43, %d" % (j * 16384))

    def k_issue(j):
        if isinstance(j, int):
            p("s_add_u32 m0, s41, %d" % (KBASE + (j % 4) * SLOT))
            kvoff(j)
        dma(10, False, "s[28:31]", KVP)

    def v_issue(j):
        if isinstance(j, int):
            p("s_add_u32 m0, s41, %d" % (VBASE + (j % 4) * SLOT))
            kvoff(j)
        dma(14, True, "s[32:35]", VP)

    if AB:
        p("s_bitcmp1_b32 s15, 1")
        p("s_cbranch_scc1 B_KV")
    def z_issue(t):
        p("s_add_u32 m0, s41, %d" % (VBASE + (t % 4) * SLOT))
        p("s_add_u32 s43, s54, %d" % t)
        p("s_and_b32 s43, s43, 15")
        p("s_lshl_b32 s43, s43, 17")
        dma(24, False, "s[80:83]", " nt" if (opts.get("znt") and t < 4) else "")

    def o_issue(t):
        p("s_add_u32 m0, s41, %d" % (KBASE + (t % 4) * SLOT))
        p("s_add_u32 s43, s54, %d" % t)
        p("s_and_b32 s43, s43, 15")
        p("s_lshl_b32 s43, s43, 14")
        p("s_add_u32 s43, s43, s55")
        dma(15, True, "s[36:39]", " sc1")

    def zpf(n, rb=None):
        p("s_add_u32 s43, s56, %d" % n)
        p("s_and_b32 s43, s43, 15")
        p("s_lshl_b32 s43, s43, 17")
        for ii in range(4):
            p("buffer_load_dwordx4 %s, v%d, s[80:83], s43 offen offset:%d%s" % (vr((32 + 16 * n if rb is None else rb) + 4 * ii, 4), 24 + ii, ii * 1024, " nt" if opts.get("znt") else ""))

    p("s_and_b32 s56, s15, 3")
    p("s_lshl_b32 s56, s56, 2")
    p("s_add_u32 s56, s56, s54")
    p("s_add_u32 s56, s56, 2")
    p("v_mov_b32 v7, 0")
    p("s_cmp_lg_u32 s2, 0")
    p("s_cbranch_scc1 NONONCE")
    p("s_cmp_lg_u32 s14, 7")
    p("s_cbranch_scc1 NONONCE")
    p("s_memrealtime s[46:47]")
    p("s_waitcnt lgkmcnt(0)")
    p("s_or_b32 s46, s46, 1")
    p("v_mov_b32 v4, s46")
    p("v_mov_b32 v5, s47")
    p("v_mov_b32 v7, 0")
    p("s_mov_b64 exec, 1")
    p("buffer_store_dwordx2 v[4:5], v7, s[76:79], 0 offen sc1")
    p("s_mov_b64 exec, -1")
    p("s_waitcnt vmcnt(0)")
    p.label("NONONCE")
    W = opts.get("kvw", 12)
    SPF = opts.get("spf", 0)
    BURST = opts.get("burst", 0)
    p("s_lshr_b32 s95, s2, 3")
    p("s_add_u32 s95, s95, s2")
    p("s_and_b32 s95, s95, 7")
    p("s_add_u32 s95, s95, %d" % opts.get("burst0", 18))
    p("s_and_b32 s57, s15, 3")
    p("s_lshl_b32 s57, s57, 2")
    p("s_add_u32 s57, s57, s54")
    groups = []
    for t, (kind, j) in enumerate(stream):
        if kind == "K":
            groups.append((("K", j), (lambda j=j: k_issue(j)), 13 + j, 4))
        else:
            if SPF:
                def vpf(j=j):
                    v_issue(j)
                    for q in range(j * SPF, min(16, (j + 1) * SPF)):
                        p("s_add_u32 s43, s57, %d" % (q // 4))
                        p("s_and_b32 s43, s43, 15")
                        p("s_lshl_b32 s43, s43, 17")
                        p("buffer_load_dwordx4 %s, v%d, s[80:83], s43 offen offset:%d" % (vr(32 + 4 * q, 4), 24 + q % 4, (q % 4) * 1024))
                npf = max(0, min(16, (j + 1) * SPF) - j * SPF)
                groups.append((("V", j), vpf, (13 + j) if j < 4 else (14 + j), 4 + npf))
            else:
                groups.append((("V", j), (lambda j=j: v_issue(j)), (13 + j) if j < 4 else (14 + j), 4))
    def nonce_load():
        p("buffer_load_dwordx2 v[28:29], v7, s[76:79], 0 offen sc1")
        if not SPF and not BURST:
            zpf(0)
    groups.append((("pf", 0), nonce_load, 0, 1 if (SPF or BURST) else 5))
    groups.append((("Z", 0), (lambda: z_issue(0)), 30, 4))
    if not SPF and not BURST:
        groups.append((("pf", 1), (lambda: zpf(1)), 0, 4))
    groups.append((("Z", 1), (lambda: z_issue(1)), 31, 4))
    if not SPF and not BURST:
        groups.append((("pf", 2), (lambda: zpf(2)), 0, 4))
        groups.append((("pf", 3), (lambda: zpf(3)), 0, 4))
    out = [("Q", 13)] * 8 + [("Q", 14)] * 8 + [("Q", 15)] * 8
    gi = [0]

    def wait_until(pred):
        last = -1
        for i, e in enumerate(out):
            if pred(e):
                last = i
        if last >= 0:
            n = len(out) - 1 - last
            p("s_waitcnt vmcnt(%d)" % n)
            del out[:last + 1]

    def issue_next(throttle=True):
        name, emit, fr, nl = groups[gi[0]]
        G = opts.get("kvg", 4)
        if G < 4 and throttle and name[0] in "KV" and nl == 4:
            def hk(ii):
                if ii % G == 0 and len(out) > W - G:
                    p("s_waitcnt vmcnt(%d)" % (W - G))
                    del out[:len(out) - (W - G)]
                out.append(name)
            hook[0] = hk
            emit()
            hook[0] = None
        else:
            if throttle and len(out) > W - 4:
                p("s_waitcnt vmcnt(%d)" % max(0, W - 4))
                del out[:len(out) - max(0, W - 4)]
            emit()
            out.extend([name] * nl)
        gi[0] += 1

    for n in range(13, 33):
        need = [("Q", n)] if n < 16 else ([("K", 0)] if n == 16 else ([("K", n - 16), ("V", n - 17)] if n < 32 else [("V", 15)]))
        names = [x[0] for x in groups]
        lastneed = max([names.index(x) for x in need if x in names] + [-1])
        while gi[0] < len(groups) and gi[0] <= lastneed + (W + 3) // 4 - opts.get("lam", 0) and groups[gi[0]][2] <= n - 1:
            issue_next(throttle=(n > 16))
        wait_until(lambda e: e in need)
        p("s_barrier")
        if BURST == 1 and opts.get("burst0", 18) <= n < opts.get("burst0", 18) + 8:
            p("s_cmp_lg_u32 s95, %d" % n)
            p("s_cbranch_scc1 NOBURST_%d" % n)
            for q in range(4):
                zpf(q)
            p.label("NOBURST_%d" % n)
        if n == 28:
            stamp(p, opts)
    while gi[0] < len(groups):
        issue_next(throttle=False)
    p.label("JOIN")
    p("s_lshl_b32 s42, s15, 2")
    p("s_add_u32 s42, s42, s18")
    p("s_lshl_b32 s42, s42, 7")
    p("s_add_u32 s42, s42, 0x%x" % FLAG_OFF)
    p("v_and_b32 v5, 7, v0")
    p("v_lshlrev_b32 v5, 3, v5")
    p("s_lshl_b32 s92, 1, s19")
    p("s_waitcnt vmcnt(0)")
    p.label("NONCE_CHK")
    p("v_cmp_eq_u32 vcc, 0, v28")
    p("s_cbranch_vccz NONCE_OK")
    p("s_sleep 8")
    p("buffer_load_dwordx2 v[28:29], v7, s[76:79], 0 offen sc1")
    p("s_waitcnt vmcnt(0)")
    p("s_sub_u32 s58, s58, 1")
    p("s_cmp_gt_i32 s58, 0")
    p("s_cbranch_scc1 NONCE_CHK")
    p.label("NONCE_OK")
    p("s_mov_b64 exec, 1")
    p("ds_write_b64 v9, v[28:29] offset:%d" % F_NONCE)
    p("s_mov_b64 exec, -1")

    p("s_mov_b32 s94, 0")
    p("v_mov_b32 v100, 0")
    p("v_mov_b32 v101, 0")

    def decide(seq, blocking, tag, keep):
        p("s_lshl_b32 s47, %s, 2" % seq)
        p("v_add_u32 v6, s47, v9")
        p("s_cmp_lg_u32 s14, 4")
        p("s_cbranch_scc1 DR_%s" % tag)
        if keep:
            p("s_waitcnt vmcnt(8)")
            p("v_cmp_eq_u64 vcc, v[100:101], v[28:29]")
            p("s_and_b32 s46, vcc_lo, 0xff")
            p("s_or_b32 s94, s94, s46")
        p("s_andn2_b32 s46, s94, s92")
        p("s_cbranch_scc1 DH_%s" % tag)
        p.label("DP_%s" % tag)
        p("buffer_load_dwordx2 v[30:31], v5, s[36:39], s42 offen sc1")
        p("s_waitcnt vmcnt(0)")
        p("v_cmp_eq_u64 vcc, v[30:31], v[28:29]")
        p("s_and_b32 s94, vcc_lo, 0xff")
        p("s_andn2_b32 s46, s94, s92")
        p("s_cbranch_scc1 DH_%s" % tag)
        if blocking:
            p("s_sleep %d" % opts.get("psleep", 1))
            p("s_sub_u32 s58, s58, 1")
            p("s_cmp_gt_i32 s58, 0")
            p("s_cbranch_scc1 DP_%s" % tag)
            p("s_andn2_b32 s46, 0xff, s92")
        else:
            p("s_mov_b32 s93, 15")
            p("s_branch DW_%s" % tag)
        p.label("DH_%s" % tag)
        p("s_lshl_b32 s47, s46, 8")
        p("s_or_b32 s47, s47, s46")
        p("s_lshr_b32 s47, s47, s19")
        p("s_ff1_i32_b32 s47, s47")
        p("s_add_u32 s47, s47, s19")
        p("s_and_b32 s93, s47, 7")
        p.label("DW_%s" % tag)
        p("s_add_u32 s47, s93, 1")
        p("v_mov_b32 v4, s47")
        p("s_mov_b64 exec, 1")
        p("ds_write_b32 v6, v4 offset:%d" % F_MB)
        p("s_mov_b64 exec, -1")
        p("s_branch DD_%s" % tag)
        p.label("DR_%s" % tag)
        p("ds_read_b32 v4, v6 offset:%d" % F_MB)
        p("s_waitcnt lgkmcnt(0)")
        p("v_readfirstlane_b32 s47, v4")
        p("s_sub_u32 s93, s47, 1")
        p("s_and_b32 s93, s93, 15")
        p("s_sub_u32 s58, s58, 1")
        p("s_cmp_lt_i32 s58, 1")
        p("s_cbranch_scc1 DD_%s" % tag)
        p("s_cmp_eq_u32 s47, 0")
        p("s_cbranch_scc1 DR_%s" % tag)
        p.label("DD_%s" % tag)

    def mark():
        p("s_lshl_b32 s47, 1, s93")
        p("s_or_b32 s92, s92, s47")

    def tile_issue(slot, half):
        p("s_lshl_b32 s44, s93, 1")
        p("s_add_u32 s44, s44, %s" % half)
        if isinstance(slot, int):
            p("s_add_u32 s47, s41, %d" % (slot * SLOT))
        else:
            p("s_add_u32 s47, s41, %s" % slot)
        p("s_mov_b32 m0, s47")
        p("s_lshl_b32 s43, s44, 14")
        p("s_add_u32 s43, s43, s55")
        dma(15, True, "s[36:39]", " sc1")
        p("s_add_u32 m0, s47, %d" % VBASE)
        p("s_lshl_b32 s43, s44, 17")
        dma(24, False, "s[80:83]", "")

    decide(1, False, "E", 0)
    p("s_cmp_eq_u32 s93, 15")
    p("s_cbranch_scc1 NOT_EARLY")
    mark()
    tile_issue(2, 0)
    p.label("NOT_EARLY")
    p("s_waitcnt lgkmcnt(0)")
    stamp(p, opts)
    p("s_barrier")
    p("s_cmp_eq_u32 s93, 15")
    p("s_cbranch_scc1 NOT_EARLY2")
    p("buffer_load_dwordx2 v[100:101], v5, s[36:39], s42 offen sc1")
    tile_issue(3, 1)
    p.label("NOT_EARLY2")
    p("s_barrier")
    p("s_cmp_lg_u32 s93, 15")
    p("s_cbranch_scc1 LATE_SKIP")
    decide(2, True, "L", 0)
    mark()
    tile_issue(2, 0)
    tile_issue(3, 1)
    p.label("LATE_SKIP")
    stamp(p, opts)
    p("s_mov_b32 s50, 4")
    p("s_branch LC_IN")
    p.label("LC")
    p("s_waitcnt vmcnt(16)")
    p("s_barrier")
    p.label("LC_IN")
    p("s_bitcmp1_b32 s50, 0")
    p("s_cbranch_scc1 LC_ODD")
    decide("s50", True, "C", 1)
    mark()
    p("s_branch LC_ISSUE")
    p.label("LC_ODD")
    p("s_cmp_lg_u32 s14, 4")
    p("s_cbranch_scc1 LC_ISSUE")
    p("buffer_load_dwordx2 v[100:101], v5, s[36:39], s42 offen sc1")
    p.label("LC_ISSUE")
    p("s_and_b32 s48, s50, 3")
    p("s_lshl_b32 s48, s48, 14")
    p("s_and_b32 s49, s50, 1")
    tile_issue("s48", "s49")
    p("s_add_u32 s50, s50, 1")
    p("s_cmp_lt_u32 s50, 16")
    p("s_cbranch_scc1 LC")
    p("s_waitcnt vmcnt(16)")
    p("s_barrier")
    p("s_waitcnt vmcnt(8)")
    p("s_barrier")
    p("s_waitcnt vmcnt(0)")
    p("s_barrier")
    stamp(p, opts)
    if opts.get("pwf", 0):
        p("s_branch LDONE")
    p("s_cmp_lg_u32 s14, 4")
    p("s_cbranch_scc1 LDONE")
    p("s_barrier")
    p("s_lshl_b32 s42, s15, 3")
    p("s_add_u32 s42, s42, s19")
    p("s_lshl_b32 s42, s42, 7")
    p("s_add_u32 s42, s42, 0x%x" % (FLAG_OFF + 8192))
    p("s_lshl_b32 s43, s18, 3")
    p("s_add_u32 s43, s43, s42")
    p("v_and_b32 v5, 3, v0")
    p("v_lshlrev_b32 v5, 3, v5")
    p("s_barrier")
    p("s_mov_b64 exec, 1")
    p("buffer_store_dwordx2 v[28:29], v7, s[36:39], s43 offen sc1")
    p("s_mov_b64 exec, -1")
    p.label("POLL2")
    p("buffer_load_dwordx2 v[30:31], v5, s[36:39], s42 offen sc1")
    p("s_waitcnt vmcnt(0)")
    p("v_cmp_ne_u64 vcc, v[30:31], v[28:29]")
    p("s_cbranch_vccz POLL2_OK")
    p("s_sleep %d" % opts.get("psleep", 1))
    p("s_sub_u32 s58, s58, 1")
    p("s_cmp_gt_i32 s58, 0")
    p("s_cbranch_scc1 POLL2")
    p.label("POLL2_OK")
    p("s_barrier")
    p.label("LDONE")
    stamp(p, opts)
    if not opts.get("dbgst"):
        stamp_flush(p, opts, 5)
    if AB:
        p("s_branch K1_END")
        p.label("B_KV")
        p("s_and_b32 s56, s15, 3")
        p("s_lshl_b32 s56, s56, 2")
        p("s_add_u32 s56, s56, s54")
        p("s_add_u32 s56, s56, 2")
        p("v_mov_b32 v7, 0")
        p("s_waitcnt vmcnt(16)")
        p("s_barrier")
        p("s_waitcnt vmcnt(8)")
        p("s_barrier")
        p("s_waitcnt vmcnt(0)")
        p("s_barrier")
        p.reset_tracking()
        p.auto_wait = True
        nxt = NR
        for n in range(16, 33):
            ts = [0] if n == 16 else ([2 * (n - 17) + 1, 2 * (n - 17) + 2] if n < 32 else [31])
            for t in ts:
                assert t < nxt, (t, nxt, n)
                reg_store(t)
            p("s_waitcnt lgkmcnt(0)")
            p("s_barrier")
            stored = max(ts)
            last_n = opts.get("blast", 29)
            target = NR + int(math.ceil((32 - NR) * (n - 15) / float(last_n - 15)))
            while nxt < 32 and nxt < target and nxt - NR <= stored:
                reg_load(nxt)
                nxt += 1
            if n == 28:
                stamp(p, opts)
            if n == 29:
                p("buffer_load_dwordx2 v[28:29], v7, s[76:79], 0 offen sc1")
                zpf(0, 232)
            if n == 30:
                z_issue(0); zpf(1, 232)
            if n == 31:
                z_issue(1); zpf(2, 232)
            if n == 32:
                zpf(3, 232)
        assert nxt == 32
        p.auto_wait = False
        p("s_branch JOIN")
    p.auto_wait = True


def gen_compute(p, opts):
    O = 0
    Q = 64
    S = [96, 128]
    NEGM = 160
    KF = 176
    NKF = opts.get("nkf", 6)
    KFR = [176 + 4 * i for i in range(6)] + [244]
    L2 = 249
    VF = 200
    KA = 232
    VA = 240
    T0, T1, T2, T3 = 244, 245, 246, 247
    L, CNT, FA, CPA, X1, X2 = 248, 249, 250, 251, 252, 253
    XB = [64, 80]
    WB = [96, 160]
    XA, WA = 224, 226
    TA, TB, TC, TD = 236, 237, 238, 239
    THR = opts.get("thr", 8.0)

    def lane_to(r):
        p("v_mbcnt_lo_u32_b32 v%d, -1, 0" % r)
        p("v_mbcnt_hi_u32_b32 v%d, -1, v%d" % (r, r))

    def lane_parts():
        lane = "v%d" % X1
        p("v_and_b32 v%d, 31, %s" % (TA, lane))
        p("v_lshrrev_b32 v%d, 5, %s" % (TB, lane))
        p("v_bfe_u32 v%d, %s, 2, 2" % (TC, lane))
        p("v_bfe_u32 v%d, %s, 4, 1" % (T1, lane))
        p("v_and_b32 v%d, 3, %s" % (T2, lane))
        p("v_lshlrev_b32 v%d, 3, v%d" % (T2, T2))
        p("v_lshl_add_u32 v%d, v%d, 5, v%d" % (TD, T1, T2))

    def wa_setup():
        lane = "v%d" % X1
        p("v_lshrrev_b32 v%d, 4, %s" % (T0, lane))
        p("v_lshl_add_u32 v%d, v%d, 3, v%d" % (T1, T0, TC))
        p("v_and_b32 v%d, 3, %s" % (T2, lane))
        p("v_lshlrev_b32 v%d, 3, v%d" % (T2, T2))
        p("v_lshl_add_u32 v%d, v%d, 8, v%d" % (T1, T1, T2))
        p("v_add_u32 v%d, %d, v%d" % (T1, VBASE, T1))
        p("v_and_b32 v%d, 1, v%d" % (T2, T0))
        p("v_lshl_add_u32 v%d, v%d, 1, v%d" % (T2, TC, T2))
        for a in range(8):
            p("v_xor_b32 v%d, %d, v%d" % (T3, a, T2))
            p("v_lshl_add_u32 v%d, v%d, 5, v%d" % (WA + a, T3, T1))
        p("v_and_b32 v%d, 15, %s" % (T1, lane))
        p("s_lshl_b32 s40, s14, 5")
        p("v_add_u32 v%d, s40, v%d" % (T1, T1))
        p("v_bfe_u32 v%d, v%d, 1, 3" % (T2, T1))
        for t in range(2):
            p("v_add_u32 v%d, %d, v%d" % (T3, 4 * t, T0))
            p("v_xor_b32 v%d, v%d, v%d" % (T3, T3, T2))
            p("v_lshlrev_b32 v%d, 4, v%d" % (T3, T3))
            p("v_lshl_add_u32 v%d, v%d, 7, v%d" % (XA + t, T1, T3))

    if opts.get("cpf", 1):
        p.raw("    s_getpc_b64 s[60:61]")
        p.label("PCL")
        p.raw("    s_sub_u32 s60, s60, PCL-%s_kernel" % NAME)
        p.raw("    s_subb_u32 s61, s61, 0")
        p("s_mov_b32 s64, s60")
        p("s_mov_b32 s65, s61")
        p.raw("    s_mov_b32 s66, K1_END-%s_kernel" % NAME)
        p("s_mov_b32 s67, 0x20000")
        p("s_lshr_b32 s62, s2, 3")
        p("s_and_b32 s62, s62, 7")
        p("s_lshl_b32 s62, s62, 2")
        p("s_add_u32 s62, s62, s14")
        p("s_lshl_b32 s62, s62, 10")
        p("v_lshlrev_b32 v%d, 4, v0" % T0)
        p("buffer_load_dwordx4 v[100:103], v%d, s[64:67], s62 offen" % T0)
        p.vm = []
    p("v_mov_b32 v%d, v0" % X1)
    p("v_mov_b32 v%d, %d" % (FA, MISC))
    p("s_lshl_b32 s40, s14, 2")
    p("v_add_u32 v%d, s40, v%d" % (CPA, FA))
    p("v_mov_b32 v%d, 0" % CNT)
    lane_parts()
    wa_setup()

    spins = []

    def flag_read():
        return Inst("ds_read_b128 %s, v%d offset:%d" % (vr(T0, 4), FA, F_LP))

    def flag_check(need):
        u = uid()
        p("v_min_u32 v%d, v%d, v%d" % (T0, T0, T1))
        p("v_min3_u32 v%d, v%d, v%d, v%d" % (T0, T0, T2, T3))
        p("v_readfirstlane_b32 s53, v%d" % T0)
        p("s_cmp_ge_u32 s53, %s" % need)
        p("s_cbranch_scc0 SPIN_%d" % u)
        p.label("SPUN_%d" % u)
        spins.append((u, need))

    def done_step(inc="1"):
        p.need([("rd",)])
        p("v_add_u32 v%d, %s, v%d" % (CNT, inc, CNT))
        p("s_mov_b64 exec, 1")
        p("ds_write_b32 v%d, v%d offset:%d" % (CPA, CNT, F_CP))
        p("s_mov_b64 exec, -1")

    def tag_last(rds):
        rds[-1].tokens_out.append(("rd",))

    def gemm_mfmas(s):
        xb, wb = XB[s % 2], WB[s % 2]
        m = []
        for t in range(2):
            for a in range(8):
                for b in range(2):
                    acc = vr(O + 4 * (2 * a + b), 4)
                    m.append(Inst("v_mfma_f32_16x16x32_bf16 %s, %s, %s, %s" % (acc, vr(wb + (t * 8 + a) * 4, 4), vr(xb + (t * 2 + b) * 4, 4), acc)))
        return m

    def g_reads(s):
        off = (s % 4) * SLOT
        xb, wb = XB[s % 2], WB[s % 2]
        r = []
        for t in range(2):
            for b in range(2):
                r.append(Inst("ds_read_b128 %s, v%d offset:%d" % (vr(xb + (t * 2 + b) * 4, 4), XA + t, off + b * 2048)))
            for a in range(8):
                for u in range(2):
                    r.append(Inst("ds_read_b64_tr_b16 %s, v%d offset:%d" % (vr(wb + (t * 8 + a) * 4 + 2 * u, 2), WA + a, off + (32 * t + 4 * u) * 256)))
        return r

    p("s_mov_b32 s88, 0")
    p("s_mov_b32 s90, 0")
    if opts.get("cpf", 1):
        p("s_waitcnt vmcnt(0)")
    p.label("GEMM")
    p.lgkm = []
    for k in range(64):
        p("v_mov_b32 v%d, 0" % (O + k))
    p("s_barrier")
    stamp(p, opts)
    for i in g_reads(0):
        p.add(i)
    p("s_waitcnt lgkmcnt(0)")
    p("s_mov_b32 s51, 4")
    p.label("GLOOP")
    stamp(p, opts)
    RG = opts.get("rgaps", 24)
    for s in range(1, 5):
        rd = g_reads(s)
        mm = gemm_mfmas(s - 1)
        n = len(rd)
        ri = 0
        pre = opts.get("gpre", 2)
        for k, m in enumerate(mm):
            if k == pre:
                p("s_barrier")
            p.add(m)
            if k >= pre:
                kk = k - pre
                hi = min(n, (n * (kk + 1) + RG - 1) // RG)
                for i in rd[ri:hi]:
                    p.add(i)
                ri = max(ri, hi)
        assert ri == n
        p("s_waitcnt lgkmcnt(0)")
        if s == 1:
            p("s_cmp_lg_u32 s90, 0")
            p("s_cbranch_scc1 SIG1")
            p.label("SIG1_BACK")
    p("s_sub_u32 s51, s51, 1")
    p("s_cmp_lg_u32 s51, 0")
    p("s_cbranch_scc1 GLOOP")
    p("s_cmp_lg_u32 s88, 0")
    p("s_cbranch_scc1 TAIL_CONT")
    stamp(p, opts)
    lane = "v%d" % X1
    p("v_and_b32 v%d, 15, %s" % (T1, lane))
    for t in range(8):
        p("v_add_u32 v%d, %d, v%d" % (T2, 2 * t, TB))
        p("v_xor_b32 v%d, v%d, v%d" % (T2, T2, T1))
        p("v_lshlrev_b32 v%d, 4, v%d" % (T2, T2))
        p("v_lshl_add_u32 v%d, v%d, 8, v%d" % (XA + t, TA, T2))
    p("v_lshl_add_u32 v%d, v%d, 2, v%d" % (T2, TB, TC))
    p("v_lshl_add_u32 v%d, v%d, 8, v%d" % (T2, T2, TD))
    for j in range(4):
        p("v_xor_b32 v%d, %d, v%d" % (T0, j, TC))
        p("v_lshl_add_u32 v%d, v%d, 6, v%d" % (T0, T0, T2))
        p("v_add_u32 v%d, %d, v%d" % (VA + j, VBASE, T0))
    for t in range(8):
        p("v_mov_b32 v%d, v%d" % (KA + t, XA + t))
    cval = (128 ** -0.5) * math.log2(math.e)
    p("s_mov_b32 s44, 0x%08x" % f32bits(cval))

    def k_reads(j):
        r = []
        for n in range(16):
            kb, t = n // 8, n % 8
            r.append(Inst("ds_read_b128 %s, v%d offset:%d" % (vr(KFR[n % NKF], 4), KA + t, (j % 4) * SLOT + kb * 8192)))
        return r

    kr0 = k_reads(0)
    tag_last(kr0)
    for i in kr0[:NKF]:
        p.add(i)
    for t in range(8):
        base = O + 8 * t
        for k in range(8):
            p("v_mul_f32 v%d, s44, v%d" % (base + k, base + k))
        for k in range(4):
            p("v_cvt_pk_bf16_f32 v%d, v%d, v%d" % (Q + 4 * t + k, base + 2 * k, base + 2 * k + 1))
    for t in range(8):
        p("v_permlane16_swap_b32 v%d, v%d" % (Q + 4 * t + 0, Q + 4 * t + 2))
        p("v_permlane16_swap_b32 v%d, v%d" % (Q + 4 * t + 1, Q + 4 * t + 3))

    def regs(a, n):
        return [("v", a + k) for k in range(n)]

    def qk_mfmas(sb, first=False):
        m = []
        for n in range(16):
            kb, t = n // 8, n % 8
            c = ("0" if first else vr(NEGM, 16)) if t == 0 else vr(sb + 16 * kb, 16)
            extra = regs(KFR[(n + 1) % NKF], 4) if (n % 2 == 0 and opts.get("pw", 1)) else []
            m.append(Inst("v_mfma_f32_32x32x16_bf16 %s, %s, %s, %s" % (vr(sb + 16 * kb, 16), vr(KFR[n % NKF], 4), vr(Q + 4 * t, 4), c), tokens_in=extra))
        return m

    def v_reads(i):
        r = []
        for n in range(16):
            ks, j = n // 4, n % 4
            for u in range(2):
                r.append(Inst("ds_read_b64_tr_b16 %s, v%d offset:%d" % (vr(VF + 4 * (n % 8) + 2 * u, 2), VA + j, (i % 4) * SLOT + (16 * ks + 8 * u) * 256)))
        return r

    def pv_mfmas(sb):
        m = []
        for n in range(16):
            ks, j = n // 4, n % 4
            extra = regs(VF + 4 * ((n + 1) % 8), 4) if n % 2 == 0 else []
            m.append(Inst("v_mfma_f32_32x32x16_bf16 %s, %s, %s, %s" % (vr(O + 16 * j, 16), vr(VF + 4 * (n % 8), 4), vr(sb + 8 * ks, 4), vr(O + 16 * j, 16)), tokens_in=extra))
        return m

    def exp_group(sb, g):
        b = sb + 8 * g
        ex = [Inst("v_exp_f32 v%d, v%d" % (b + k, b + k)) for k in range(8)]
        if opts.get("l2", 0):
            ad = [Inst("v_add_f32 v%d, v%d, v%d" % ((L, L, b + k) if k % 2 == 0 else (L2, L2, b + k))) for k in range(8)]
        else:
            ad = [Inst("v_add_f32 v%d, v%d, v%d" % (L, L, b + k)) for k in range(8)]
        cv = [Inst("v_cvt_pk_bf16_f32 v%d, v%d, v%d" % (b + k, b + 2 * k, b + 2 * k + 1)) for k in range(4)]
        r = ex + ad + cv
        o = []
        for k in range(8):
            o.append(ex[k])
            if k >= 1:
                o.append(ad[k - 1])
            if k >= 3 and k % 2 == 1:
                o.append(cv[(k - 3) // 2])
        o.append(ad[7])
        o.append(cv[3])
        check_order(r, o)
        return o

    def max_tree(sb):
        r = []
        r.append(Inst("v_max3_f32 v%d, v%d, v%d, v%d" % (X1, sb, sb + 1, sb + 2)))
        r.append(Inst("v_max3_f32 v%d, v%d, v%d, v%d" % (X2, sb + 16, sb + 17, sb + 18)))
        for k in range(3, 15, 2):
            r.append(Inst("v_max3_f32 v%d, v%d, v%d, v%d" % (X1, X1, sb + k, sb + k + 1)))
            r.append(Inst("v_max3_f32 v%d, v%d, v%d, v%d" % (X2, X2, sb + 16 + k, sb + 16 + k + 1)))
        r.append(Inst("v_max3_f32 v%d, v%d, v%d, v%d" % (X1, X1, sb + 15, sb + 31)))
        r.append(Inst("v_max_f32 v%d, v%d, v%d" % (X1, X1, X2)))
        return r

    mm = qk_mfmas(S[0], first=True)
    zero = [Inst("v_mov_b32 v%d, 0" % (O + k)) for k in range(64)] + [Inst("v_mov_b32 v%d, 0" % L), Inst("v_mov_b32 v%d, 0" % L2)]
    seq = []
    zi = 0
    for n in range(16):
        seq.append(mm[n])
        if n + NKF < 16:
            seq.append(kr0[n + NKF])
        seq += zero[zi:zi + 4]; zi += 4
    seq += zero[zi:]
    for i in seq:
        p.add(i)
    for i in max_tree(S[0]):
        p.add(i)
    p("v_mov_b32 v%d, v%d" % (X2, X1))
    p("v_permlane32_swap_b32 v%d, v%d" % (X1, X2))
    p("v_max_f32 v%d, v%d, v%d" % (X1, X1, X2))
    for k in range(16):
        p("v_sub_f32 v%d, 0, v%d" % (NEGM + k, X1))
    for k in range(32):
        p("v_sub_f32 v%d, v%d, v%d" % (S[0] + k, S[0] + k, X1))

    rare_blocks = []

    def iteration(i, tag, qk=True, head=True):
        par = i % 2
        sc, sn = S[par], S[1 - par]
        stamp(p, opts, 2)
        dpv = pv_mfmas(sn)[12:] if head else []
        mt = max_tree(sc) if head else []
        if head:
            p.add(dpv[0])
            for x in mt[:4]:
                p.add(x)
        p("s_waitcnt lgkmcnt(0)")
        p("s_barrier")
        stamp(p, opts, 2)
        kr = k_reads(i + 1) if qk else []
        if head:
            pre = kr[:NKF]
            seq = list(pre[:3])
            fill = pre[3:] + mt[4:]
            per = (len(fill) + 1) // 2
            for k, m in enumerate(dpv[1:]):
                seq.append(m)
                if k < 2:
                    seq += fill[k * per:(k + 1) * per]
            last = seq.pop()
            cmpi = Inst("v_cmp_lt_f32 vcc, 0x%08x, v%d" % (f32bits(THR), X1))
            seq += [cmpi, last]
            check_order(pre + dpv[1:] + mt[4:] + [cmpi], seq)
            for x in seq:
                p.add(x)
            p("s_cbranch_vccnz RARE_%s" % tag)
            p.label("BACK_%s" % tag)
            rare_blocks.append((tag, sc))
        else:
            for x in kr[:NKF]:
                p.add(x)
        vrd = v_reads(i)
        tag_last(vrd)
        pv = pv_mfmas(sc)
        e0, e1, e2, e3 = [exp_group(sc, g) for g in range(4)]
        out = []
        if qk:
            mm = qk_mfmas(sn)
            ref = []
            for n in range(16):
                if n % 2 == 0:
                    for q in (n, n + 1):
                        if q >= NKF:
                            ref.append(kr[q])
                ref.append(mm[n])
            h2 = opts.get("e2split", 8)
            seq_ref = e0 + e1 + e2[:h2] + ref
            fill = e0 + e1 + e2[:h2] + vrd[:16]
            ph1 = interleave(mm, fill, lead=opts.get("lead1", 16))
            res = []
            cnt = 0
            for x in ph1:
                res.append(x)
                if x.kind == "mfma":
                    if cnt + NKF < 16:
                        res.append(kr[cnt + NKF])
                    cnt += 1
            out += res
            rest_e2 = e2[h2:]
        else:
            seq_ref = e0 + e1
            out += vrd[:16] + e0 + e1
            rest_e2 = e2
        fr = []
        npv = 12 if qk else 16
        ref2 = list(rest_e2 + e3)
        for n in range(16):
            if n % 2 == 0:
                ref2 += vrd[2 * n:2 * n + 4]
            if n < npv:
                ref2.append(pv[n])
        seq_ref = seq_ref + ref2 + fr
        a = interleave(pv[:8], rest_e2 + e3[:len(e3) // 2], lead=0)
        bpart = interleave(pv[8:12], e3[len(e3) // 2:] + fr, lead=0)
        res = []
        cnt = 0
        for x in a + bpart:
            res.append(x)
            if x.kind == "mfma":
                if cnt + 8 < 16:
                    res.append(vrd[2 * (cnt + 8)]); res.append(vrd[2 * (cnt + 8) + 1])
                cnt += 1
        out += res
        cpart = pv[12:] if not qk else []
        check_order(seq_ref, out + cpart)
        for x in out + cpart:
            p.add(x)

    if opts.get("cprio"):
        p("s_setprio %d" % opts["cprio"])
    if opts.get("compact", 1):
        for k in range(4):
            p("v_mov_b32 v%d, 0" % (S[1] + 24 + k))
        for k in range(16):
            p("v_mov_b32 v%d, 0" % (VF + 16 + k))
        p("s_waitcnt lgkmcnt(0)")
        p("s_mov_b32 s51, 4")
        saved_items = len(p.items)
        nrb = len(rare_blocks)
        iteration(3, "DRY")
        st = [set(x) for x in p.lgkm]
        del p.items[saved_items:]
        del rare_blocks[nrb:]
        p.lgkm = st
        p.label("K1_LOOP")
        stamp(p, opts)
        for i in range(0, 4):
            iteration(i, "L%d" % i)
        assert opts.get("stamp") or st == p.lgkm
        p("s_sub_u32 s51, s51, 1")
        p("s_cmp_lg_u32 s51, 0")
        p("s_cbranch_scc1 K1_LOOP")
        for m in pv_mfmas(S[1])[12:]:
            p.add(m)
    else:
        iteration(0, "A0", head=False)
        iteration(1, "A1")
        iteration(2, "A2")
        p("s_mov_b32 s51, 3")
        p.label("K1_LOOP")
        entry_state = [set(x) for x in p.lgkm]
        stamp(p, opts)
        for i in range(3, 7):
            iteration(i, "L%d" % i)
        assert opts.get("stamp") or entry_state == p.lgkm, (entry_state, p.lgkm)
        p("s_sub_u32 s51, s51, 1")
        p("s_cmp_lg_u32 s51, 0")
        p("s_cbranch_scc1 K1_LOOP")
        iteration(15, "Z", qk=False)
    stamp(p, opts)
    AL = X2
    p("v_add_f32 v%d, v%d, v%d" % (L, L, L2))
    p("v_mov_b32 v%d, v%d" % (X1, L))
    p("v_permlane32_swap_b32 v%d, v%d" % (L, X1))
    p("v_add_f32 v%d, v%d, v%d" % (L, L, X1))
    p("v_rcp_f32 v%d, v%d" % (AL, L))
    LN = L
    lane_to(X1)
    p("v_lshlrev_b32 v%d, 4, v%d" % (LN, X1))
    p("s_lshl_b32 s43, s17, 15")
    p("s_lshl_b32 s41, s14, 12")
    p("s_add_u32 s43, s43, s41")
    p("s_add_u32 s42, s43, 16384")
    p("v_and_b32 v%d, 31, v%d" % (T0, X1))
    p("s_lshl_b32 s40, s14, 5")
    p("v_add_u32 v%d, s40, v%d" % (T0, T0))
    p("v_bfe_u32 v%d, v%d, 1, 3" % (T1, T0))
    p("v_lshrrev_b32 v%d, 5, v%d" % (T2, X1))
    for c in range(4):
        p("v_add_u32 v%d, %d, v%d" % (T3, 2 * c, T2))
        p("v_xor_b32 v%d, v%d, v%d" % (T3, T3, T1))
        p("v_lshlrev_b32 v%d, 4, v%d" % (T3, T3))
        p("v_lshl_add_u32 v%d, v%d, 7, v%d" % (KA + c, T0, T3))
    p("v_add_u32 v%d, s41, v%d" % (KA + 4, LN))
    for u in range(8):
        base = O + 8 * u
        for k in range(8):
            p("v_mul_f32 v%d, v%d, v%d" % (base + k, base + k, AL))
        dst = Q + 4 * u
        for k in range(4):
            p("v_cvt_pk_bf16_f32 v%d, v%d, v%d" % (dst + k, base + 2 * k, base + 2 * k + 1))
        p("v_permlane32_swap_b32 v%d, v%d" % (dst, dst + 2))
        p("v_permlane32_swap_b32 v%d, v%d" % (dst + 1, dst + 3))
        p("ds_write_b128 v%d, %s offset:%d" % (KA + u % 4, vr(dst, 4), (u // 4) * SLOT))
        if u % 4 == 3:
            for q in range(4):
                p("ds_read_b128 %s, v%d offset:%d" % (vr(96 + 16 * (u // 4) + 4 * q, 4), KA + 4, (u // 4) * SLOT + q * 1024))
    for u in range(8):
        p("buffer_store_dwordx4 %s, v%d, s[36:39], %s offen offset:%d sc1" % (vr(96 + 4 * u, 4), LN, "s43" if u < 4 else "s42", (u % 4) * 1024))
    lane_parts()
    wa_setup()
    p("s_lshl_b32 s56, s15, 2")
    p("s_add_u32 s56, s56, s18")
    p("s_lshl_b32 s56, s56, 7")
    p("s_lshl_b32 s42, s19, 3")
    p("s_add_u32 s56, s56, s42")
    p("s_add_u32 s56, s56, 0x%x" % FLAG_OFF)
    p("s_waitcnt lgkmcnt(0)")
    stamp(p, opts)
    p("s_mov_b32 s90, 1")
    p("s_mov_b32 s88, 1")
    p("s_branch GEMM")
    p.label("TAIL_CONT")
    p.lgkm = []
    p.vm = []
    stamp(p, opts)
    p("s_lshl_b32 s40, s15, 5")
    p("s_add_u32 s40, s40, s19")
    p("s_lshl_b32 s40, s40, 16")
    p("s_add_u32 s40, s40, 0x%x" % PART_OFF)
    p("s_lshl_b32 s41, s14, 12")
    p("s_add_u32 s40, s40, s41")
    p("s_lshl_b32 s41, s18, 14")
    p("s_add_u32 s41, s41, s40")
    for j in range(4):
        p("s_cmp_eq_u32 s18, %d" % j)
        p("s_cbranch_scc1 SKIPST_%d" % j)
        p("s_add_u32 s42, s41, %d" % (j * 8 * 65536))
        for q in range(4):
            p("buffer_store_dwordx4 %s, v%d, s[36:39], s42 offen offset:%d sc1" % (vr(O + 16 * j + 4 * q, 4), LN, q * 1024))
        p.label("SKIPST_%d" % j)
    for j in range(4):
        p("s_cmp_lg_u32 s18, %d" % j)
        p("s_cbranch_scc1 SKIPMV_%d" % j)
        for k in range(16):
            p("v_mov_b32 v%d, v%d" % (64 + k, O + 16 * j + k))
        p.label("SKIPMV_%d" % j)
    if opts.get("pwf", 0):
        p("ds_read_b64 %s, v%d offset:%d" % (vr(KA, 2), FA, F_NONCE))
        p("s_lshl_b32 s57, s15, 3")
        p("s_add_u32 s57, s57, s19")
        p("s_lshl_b32 s57, s57, 7")
        p("s_lshl_b32 s42, s14, 3")
        p("s_add_u32 s57, s57, s42")
        p("s_add_u32 s57, s57, 0x%x" % (FLAG_OFF + 8192))
        p("s_lshl_b32 s42, s18, 5")
        p("s_add_u32 s42, s42, s57")
        p("v_mov_b32 v%d, 0" % X2)
        p("s_waitcnt vmcnt(0) lgkmcnt(0)")
        p("s_mov_b64 exec, 1")
        p("buffer_store_dwordx2 %s, v%d, s[36:39], s42 offen sc1" % (vr(KA, 2), X2))
        p("s_mov_b64 exec, -1")
    else:
        p("s_waitcnt vmcnt(0)")
        p("s_barrier")
    stamp(p, opts)
    lane_to(X1)
    p("s_mov_b32 s84, s70")
    p("s_mov_b32 s85, s71")
    p("s_mov_b32 s86, 0x200000")
    p("s_mov_b32 s87, 0x20000")
    p("v_and_b32 v%d, 31, v%d" % (T0, X1))
    p("v_lshrrev_b32 v%d, 5, v%d" % (T2, X1))
    p("v_lshlrev_b32 v%d, 11, v%d" % (T0, T0))
    p("v_lshl_add_u32 v%d, v%d, 4, v%d" % (T0, T2, T0))
    p("s_lshl_b32 s41, s18, 19")
    p("s_add_u32 s41, s41, s40")
    if opts.get("pwf", 0):
        p("v_and_b32 v%d, 3, v%d" % (T1, X1))
        p("v_lshlrev_b32 v%d, 5, v%d" % (T1, T1))
        p.auto_wait = False
        p.label("POLLW")
        p("buffer_load_dwordx2 %s, v%d, s[36:39], s57 offen sc1" % (vr(KA + 2, 2), T1))
        p("s_waitcnt vmcnt(0)")
        p("v_cmp_ne_u64 vcc, %s, %s" % (vr(KA + 2, 2), vr(KA, 2)))
        p("s_cbranch_vccz POLLW_OK")
        p("s_sleep %d" % opts.get("psleep", 1))
        p("s_sub_u32 s58, s58, 1")
        p("s_cmp_gt_i32 s58, 0")
        p("s_cbranch_scc1 POLLW")
        p.label("POLLW_OK")
        p.auto_wait = True
        p.vm = []
    else:
        p("s_barrier")
    stamp(p, opts)
    for r in range(1, 4):
        p("s_add_u32 s42, s18, %d" % r)
        p("s_and_b32 s42, s42, 3")
        p("s_lshl_b32 s42, s42, 14")
        p("s_add_u32 s42, s42, s41")
        for q in range(4):
            p("buffer_load_dwordx4 %s, v%d, s[36:39], s42 offen offset:%d sc1" % (vr(96 + 16 * (r - 1) + 4 * q, 4), LN, q * 1024))
    p("s_lshl_b32 s42, s15, 2")
    p("s_add_u32 s42, s42, s14")
    p("s_lshl_b32 s42, s42, 16")
    p("s_lshl_b32 s43, s19, 8")
    p("s_add_u32 s42, s42, s43")
    p("s_lshl_b32 s43, s18, 6")
    p("s_add_u32 s42, s42, s43")
    for r in range(3):
        for k in range(16):
            p("v_add_f32 v%d, v%d, v%d" % (64 + k, 64 + k, 96 + 16 * r + k))
    for k in range(8):
        p("v_cvt_pk_bf16_f32 v%d, v%d, v%d" % (80 + k, 64 + 2 * k, 64 + 2 * k + 1))
    for pr in range(2):
        p("v_permlane16_swap_b32 v%d, v%d" % (80 + 4 * pr, 80 + 4 * pr + 2))
        p("v_permlane16_swap_b32 v%d, v%d" % (80 + 4 * pr + 1, 80 + 4 * pr + 3))
        p("buffer_store_dwordx4 %s, v%d, s[84:87], s42 offen offset:%d%s" % (vr(80 + 4 * pr, 4), T0, pr * 32, {0: "", 1: " sc1", 2: " nt", 3: " sc0 sc1"}[opts.get("opol", 0)]))
    if opts.get("stamp"):
        p("s_waitcnt vmcnt(0)")
    stamp(p, opts)
    if opts.get("dbgst"):
        p("s_cmp_lg_u32 s14, 0")
        p("s_cbranch_scc1 NODBG")
        p("s_mov_b32 s42, 8")
        p("s_cmp_eq_u32 s2, 8")
        p("s_cbranch_scc1 DODBG")
        p("s_mov_b32 s42, 36")
        p("s_cmp_lg_u32 s2, 133")
        p("s_cbranch_scc1 NODBG")
        p.label("DODBG")
        p("v_readlane_b32 s43, v254, 0")
        for n, idx in enumerate([1, 6, 11, 14, 18, 20, 21]):
            p("v_readlane_b32 s60, v254, %d" % idx)
            p("s_sub_u32 s60, s60, s43")
            p("v_writelane_b32 v%d, s60, %d" % (T2, n))
        lane_to(T1)
        p("v_lshlrev_b32 v%d, 2, v%d" % (T1, T1))
        p("s_mov_b64 exec, 0x7f")
        p("buffer_store_dword v%d, v%d, s[76:79], s42 offen" % (T2, T1))
        p("s_mov_b64 exec, -1")
        p.label("NODBG")
    else:
        stamp_flush(p, opts, T1)
    p("s_branch K1_END")
    p.auto_wait = False
    p.label("SIG1")
    p("s_mov_b32 s90, 0")
    p("s_waitcnt vmcnt(0)")
    p("v_mov_b32 v%d, 1" % X1)
    p("s_mov_b64 exec, 1")
    p("ds_add_rtn_u32 v%d, v%d, v%d offset:%d" % (X2, FA, X1, F_C1))
    p("ds_read_b64 %s, v%d offset:%d" % (vr(T0, 2), FA, F_NONCE))
    p("s_waitcnt lgkmcnt(0)")
    p("v_readfirstlane_b32 s53, v%d" % X2)
    p("s_cmp_lg_u32 s53, 3")
    p("s_cbranch_scc1 NOSIG1")
    p("v_mov_b32 v%d, 0" % X2)
    p("buffer_store_dwordx2 %s, v%d, s[36:39], s56 offen sc1" % (vr(T0, 2), X2))
    p.label("NOSIG1")
    p("s_mov_b64 exec, -1")
    p("s_branch SIG1_BACK")
    for tag, sc in rare_blocks:
        p.label("RARE_%s" % tag)
        p("v_mov_b32 v%d, v%d" % (X2, X1))
        p("v_permlane32_swap_b32 v%d, v%d" % (X1, X2))
        p("v_max3_f32 v%d, v%d, v%d, 0" % (X1, X1, X2))
        p("v_sub_f32 v%d, 0, v%d" % (X2, X1))
        p("v_exp_f32 v%d, v%d" % (X2, X2))
        for k in range(16):
            p("v_sub_f32 v%d, v%d, v%d" % (NEGM + k, NEGM + k, X1))
        for k in range(32):
            p("v_sub_f32 v%d, v%d, v%d" % (sc + k, sc + k, X1))
        p("v_mul_f32 v%d, v%d, v%d" % (L, L, X2))
        p("v_mul_f32 v%d, v%d, v%d" % (L2, L2, X2))
        for k in range(64):
            p("v_mul_f32 v%d, v%d, v%d" % (O + k, O + k, X2))
        p("s_nop 1")
        p("s_branch BACK_%s" % tag)
    p.auto_wait = True


def build(opts):
    p = Prog()
    gen_kernel(p, opts)
    n = p.pad_hazards()
    sys.stderr.write("hazard nop states inserted: %d\n" % n)
    s = HEADER
    s += "; @launch grid=(256,1,1) block=(512,1,1) lds=%d\n" % LDS_BYTES
    s += '.amdgcn_target "amdgcn-amd-amdhsa--gfx950"\n.text\n'
    s += p.text()
    s += '.section .rodata,"a"\n'
    s += kd(NAME + "_kernel", 256, 100)
    return s


if __name__ == "__main__":
    out = sys.argv[1]
    opts = {}
    for a in sys.argv[2:]:
        k, v = a.split("=")
        opts[k] = float(v) if "." in v else int(v)
    open(out, "w").write(build(opts))
```
